```python
import torch

def _softmax(x, axis=-1):
    return torch.softmax(x, dim=axis)
def _gelu(x):
    return torch.nn.functional.gelu(x, approximate="tanh")
def _silu(x):
    return torch.nn.functional.silu(x)
def _sigmoid(x):
    return torch.sigmoid(x)
def _layernorm(x, axis=-1, eps=1e-5):
    m = x.mean(dim=axis, keepdim=True)
    v = x.var(dim=axis, keepdim=True, unbiased=False)
    return (x - m) / torch.sqrt(v + eps)
def _scatter_add(tgt, idx, src, axis=0):
    return tgt.clone().index_add_(axis, idx, src)
def _segment_sum(src, seg, n):
    out = torch.zeros((n,) + src.shape[1:], dtype=src.dtype)
    return out.index_add_(0, seg, src)
def _pad(x, pw):
    flat = tuple(v for pair in reversed(pw) for v in pair)
    return torch.nn.functional.pad(x, flat)

kernel_name = 'recurrent_scan__mha_block_cached__glu_gated_glu__decode'

def setup_inputs():

    _w = (lambda a: (lambda t: t.to(torch.bfloat16) if t.is_floating_point() else t)(torch.as_tensor(a)))
    def _A_setup():
        B, Sq, D = 1, 1, 512
        H, Sk, Dh = 32, 8192, 128
        return {
            "x": _w((lambda *s: torch.randn(*s, dtype=torch.bfloat16) * 0.05)(B, Sq, D)),
            "k_cache": _w((lambda *s: torch.randn(*s, dtype=torch.bfloat16) * 0.8)(B, H, Sk, Dh)),
            "v_cache": _w((lambda *s: torch.randn(*s, dtype=torch.bfloat16) * 0.8)(B, H, Sk, Dh)),
            "wq": _w((lambda *s: torch.randn(*s, dtype=torch.bfloat16) * 0.8)(D, H * Dh) * (D ** -0.5)),
            "wo": _w((lambda *s: torch.randn(*s, dtype=torch.bfloat16) * 0.8)(H * Dh, D) * ((H * Dh) ** -0.5)),
        }
    _A_in = _A_setup()

    def _B_setup():
        B, S, D, F = 1, 1, 512, 1376
        return {
            "x": _w((lambda *s: torch.randn(*s, dtype=torch.bfloat16) * 0.05)(B, S, D)),
            "w_gate": _w((lambda *s: torch.randn(*s, dtype=torch.bfloat16) * 0.8)(D, F)),
            "w_up": _w((lambda *s: torch.randn(*s, dtype=torch.bfloat16) * 0.2)(D, F)),
            "w_down": _w((lambda *s: torch.randn(*s, dtype=torch.bfloat16) * 0.2)(F, D)),
        }
    _B_in = _B_setup()

    return {
        "A_x": _A_in["x"],
        "A_k_cache": _A_in["k_cache"],
        "A_v_cache": _A_in["v_cache"],
        "A_wq": _A_in["wq"],
        "A_wo": _A_in["wo"],
        "B_x": _B_in["x"],
        "B_w_gate": _B_in["w_gate"],
        "B_w_up": _B_in["w_up"],
        "B_w_down": _B_in["w_down"],
    }

def reference(A_x, A_k_cache, A_v_cache, A_wq, A_wo, B_x, B_w_gate, B_w_up, B_w_down):
    def _A_ref(x, k_cache, v_cache, wq, wo):
        B, Sq, D = x.shape
        H, Dh = 32, 128
        q = (lambda x, *d: x.permute(*d))((x @ wq).reshape(B, Sq, H, Dh), 0, 2, 1, 3)
        scores = torch.einsum("bhqd,bhkd->bhqk", q, k_cache) * (Dh ** -0.5)
        p = _softmax(scores, axis=-1)
        o = torch.einsum("bhqk,bhkd->bhqd", p, v_cache)
        return (lambda x, *d: x.permute(*d))(o, 0, 2, 1, 3).reshape(B, Sq, H * Dh) @ wo

    def _B_ref(x, w_gate, w_up, w_down):
        g = torch.einsum("bsd,df->bsf", x, w_gate)
        u = torch.einsum("bsd,df->bsf", x, w_up)
        h = _sigmoid(g) * u
        return torch.einsum("bsf,fd->bsd", h, w_down)

    x = A_x
    xn = _layernorm(x, axis=-1)
    s = _A_ref(xn, A_k_cache, A_v_cache, A_wq, A_wo)
    g = _silu(_B_ref(xn, B_w_gate, B_w_up, B_w_down))
    return x + s * g
```

```python
import re

TRANS = ("v_exp_f32", "v_log_f32", "v_rcp_f32", "v_rsq_f32", "v_sqrt_f32", "v_sin_f32", "v_cos_f32", "v_rcp_iflag_f32")

def regs_of(tok):
    tok = tok.strip()
    tok = tok.lstrip("-")
    m = re.fullmatch(r"abs\((.*)\)", tok)
    if m: tok = m.group(1)
    m = re.fullmatch(r"\|(.*)\|", tok)
    if m: tok = m.group(1)
    m = re.fullmatch(r"([vas])(\d+)", tok)
    if m: return [(m.group(1), int(m.group(2)))]
    m = re.fullmatch(r"([vas])\[(\d+):(\d+)\]", tok)
    if m: return [(m.group(1), i) for i in range(int(m.group(2)), int(m.group(3)) + 1)]
    if tok == "vcc": return [("s", "vcc_lo"), ("s", "vcc_hi")]
    if tok in ("vcc_lo", "vcc_hi", "m0"): return [("s", tok)]
    if tok == "exec": return [("s", "exec_lo"), ("s", "exec_hi")]
    if tok in ("exec_lo", "exec_hi"): return [("s", tok)]
    return []

class Ins:
    def __init__(self, text):
        self.text = text
        t = text.split(";")[0].strip()
        self.is_label = t.endswith(":")
        self.is_dir = t.startswith(".") or t == ""
        self.op = ""
        self.dst = []; self.src = []
        self.kind = "none"
        self.srcC = []
        self.data = []
        if self.is_label or self.is_dir: return
        parts = t.split(None, 1)
        op = parts[0]; self.op = op
        rest = parts[1] if len(parts) > 1 else ""
        ops = []; cur = ""; depth = 0
        for ch in rest:
            if ch in "[(": depth += 1
            if ch in "])": depth -= 1
            if ch == "," and depth == 0:
                ops.append(cur.strip()); cur = ""
            else: cur += ch
        if cur.strip(): ops.append(cur.strip())
        mods = ""
        if ops:
            sp = ops[-1].split(None, 1)
            if len(sp) > 1 and not ops[-1].startswith("hwreg") and not ops[-1].startswith("vmcnt") and not ops[-1].startswith("lgkm"):
                ops[-1] = sp[0]; mods = sp[1]
        self.mods = mods; self.ops = ops
        R = [regs_of(o) for o in ops]
        base = re.sub(r"_(e32|e64|dpp|sdwa)$", "", op)
        self.base = base
        self.dpp = op.endswith("_dpp") or "row_" in mods or "quad_perm" in mods or "wave_" in mods
        if op.startswith("v_mfma"):
            self.kind = "mfma"; self.dst = R[0]; self.src = R[1] + R[2] + R[3]; self.srcC = R[3]; self.srcAB = R[1] + R[2]
            self.passes = 8 if "32x32" in op else (2 if "4x4x4" in op else 4)
        elif op.startswith("v_"):
            self.kind = "valu"
            if base.startswith("v_cmp"):
                self.dst = R[0]; self.src = sum(R[1:], [])
            elif base in ("v_readlane_b32", "v_readfirstlane_b32"):
                self.dst = R[0]; self.src = sum(R[1:], []); self.readlane = True
            elif base.startswith("v_permlane"):
                self.dst = R[0] + R[1]; self.src = R[0] + R[1]
            elif base in ("v_add_co_u32", "v_sub_co_u32", "v_addc_co_u32"):
                self.dst = R[0] + R[1]; self.src = sum(R[2:], [])
            else:
                self.dst = R[0]; self.src = sum(R[1:], [])
                if base in ("v_fmac_f32", "v_dot2c_f32_bf16") or self.dpp:
                    self.src = self.src + R[0]
                if base == "v_cndmask_b32" and len(ops) == 3:
                    self.src += regs_of("vcc")
            if base.startswith("v_dot2"):
                self.dot = True
                self.srcC = R[3] if len(R) > 3 else R[0]
                self.srcAB = R[1] + R[2]
        elif op.startswith("buffer_") or op.startswith("global_"):
            self.kind = "vmem"
            isload = "_load" in op
            lds = " lds" in (" " + mods)
            if op.startswith("buffer_"):
                if isload and not lds:
                    self.dst = R[0]; self.src = sum(R[1:], [])
                elif isload:
                    self.src = sum(R, []) + regs_of("m0")
                else:
                    self.src = sum(R, []); self.data = R[0]
                    if "atomic" in op and "sc0" in mods: self.dst = R[0]
            else:
                if isload: self.dst = R[0]; self.src = sum(R[1:], [])
                else: self.src = sum(R, []); self.data = R[1]
            self.wide = ("x4" in op or "x3" in op) and not isload
            self.lds = lds
        elif op.startswith("ds_"):
            self.kind = "ds"
            if "read" in op or "bpermute" in op or "swizzle" in op:
                self.dst = R[0]; self.src = sum(R[1:], [])
            else:
                self.src = sum(R, [])
        elif op.startswith("s_"):
            self.kind = "salu"
            if op.startswith(("s_cmp", "s_waitcnt", "s_barrier", "s_nop", "s_cbranch", "s_branch", "s_sleep", "s_setprio", "s_endpgm", "s_bitcmp")):
                self.src = sum(R, [])
            else:
                self.dst = R[0]; self.src = sum(R[1:], [])
                if "saveexec" in op: self.dst += regs_of("exec")
        else:
            raise ValueError("unknown op " + text)

    def states(self):
        if self.op == "s_nop": return int(self.ops[0], 0) + 1
        return 1

def need_states(p, c):
    n = 0
    pd = set(p.dst)
    vd = {r for r in pd if r[0] in "va"}
    sd = {r for r in pd if r[0] == "s"}
    cs = set(c.src); cd = set(c.dst)
    if p.kind == "valu":
        isdot = getattr(p, "dot", False)
        if vd & cs:
            if c.kind == "valu" and c.dpp: n = max(n, 2)
            if c.kind == "valu" and c.base.startswith("v_permlane"): n = max(n, 2)
            if c.kind == "valu" and getattr(c, "readlane", False): n = max(n, 1)
            if c.kind == "mfma": n = max(n, 2)
            if p.base in TRANS and c.kind == "valu" and c.base not in TRANS: n = max(n, 1)
        if isdot and (vd & (cs | cd)):
            if getattr(c, "dot", False) and c.base == p.base:
                if vd & set(c.srcAB): n = max(n, 3)
            else: n = max(n, 3)
        if sd & cs:
            if c.kind == "valu": n = max(n, 4 if getattr(c, "readlane", False) else 2)
            if c.kind == "mfma": n = max(n, 4)
            if c.kind == "vmem": n = max(n, 5)
    elif p.kind == "mfma":
        full = {2: 5, 4: 8, 8: 12}[p.passes]
        part = {2: 4, 4: 6, 8: 10}[p.passes]
        if c.kind == "mfma":
            if vd & set(c.srcAB): n = max(n, full)
            if vd & set(c.srcC):
                if c.srcC == p.dst and c.passes == p.passes: n = max(n, 2 if p.passes == 2 else 0)
                else: n = max(n, part)
            elif vd & cd: n = max(n, full)
        elif vd & (cs | cd): n = max(n, full)
        if c.kind == "valu" and (set(p.srcC) & cd): n = max(n, {2: 1, 4: 3, 8: 7}[p.passes])
    elif p.kind == "vmem":
        if getattr(p, "wide", False) and (set(p.data) & cd):
            n = max(n, 2 if c.kind in ("valu", "mfma") else 1)
    elif p.kind == "salu":
        if ("s", "m0") in sd and c.kind == "vmem" and getattr(c, "lds", False): n = max(n, 1)
    return n

class Builder:
    def __init__(self):
        self.L = []
        self.vq = []
        self.vdone = 0
        self.dq = []
        self.ddone = 0
        self.smem = False
    def e(self, text):
        for line in text.split("\n"):
            line = line.strip()
            if line: self.L.append(line)
    def vm(self, tag, text):
        self.e(text); self.vq.append(tag)
    def vneed(self, tag):
        i = len(self.vq) - 1 - self.vq[::-1].index(tag)
        if i < self.vdone: return
        n = min(len(self.vq) - 1 - i, 63)
        self.e(f"s_waitcnt vmcnt({n})")
        self.vdone = len(self.vq) - n
    def vall(self):
        if self.vdone < len(self.vq): self.e("s_waitcnt vmcnt(0)")
        self.vdone = len(self.vq)
    def ds(self, tag, text):
        self.e(text); self.dq.append(tag)
    def dneed(self, tag=None):
        if tag is None or self.smem: i = len(self.dq) - 1
        else: i = len(self.dq) - 1 - self.dq[::-1].index(tag)
        if i < self.ddone and not self.smem: return
        n = min(len(self.dq) - 1 - i, 15)
        self.e(f"s_waitcnt lgkmcnt({n})")
        self.ddone = len(self.dq) - n
        self.smem = False
    def finalize(self):
        out = []
        window = []
        pending = {}
        seen = {}
        dead = False
        for line in self.L:
            ins = Ins(line)
            if ins.is_dir:
                out.append(line); continue
            if ins.is_label:
                name = line.split(":")[0].strip()
                seen[name] = len(out)
                if dead: window = []
                dead = False
                for w in pending.pop(name, []):
                    have = {id(p): k for k, (p, d) in enumerate(window)}
                    for p, d in w:
                        if id(p) in have:
                            k = have[id(p)]
                            window[k] = (p, min(d, window[k][1]))
                        else: window.append((p, d))
                out.append(line); continue
            req = 0
            for p, dist in window:
                r = need_states(p, ins) - dist
                if r > req: req = r
            if req > 0:
                out.append(f"s_nop {req-1}")
                window = [(p, d + req) for p, d in window]
            if ins.op.startswith(("s_cbranch", "s_branch")):
                tgt = ins.ops[0]
                if tgt in seen:
                    w = [(p, d + 1) for p, d in window]
                    extra = 0
                    for l2 in out[seen[tgt]:]:
                        i2 = Ins(l2)
                        if i2.is_dir or i2.is_label: continue
                        for p, d in w:
                            extra = max(extra, need_states(p, i2) - d)
                        w = [(p, d + i2.states()) for p, d in w if d + i2.states() < 24]
                        if not w: break
                    if extra > 0:
                        out.append(f"s_nop {extra-1}")
                        window = [(p, d + extra) for p, d in window]
                else:
                    pending.setdefault(tgt, []).append([(p, d + 1) for p, d in window])
            out.append(line)
            st = ins.states()
            window = [(p, d + st) for p, d in window if d + st < 24]
            window.append((ins, 0))
            if ins.op in ("s_branch", "s_endpgm"): dead = True
        assert not pending, pending
        return out
```

```python
import sys, struct, math
from asmb import Builder
KN = "recurrent_scan__mha_block_cached__glu_gated_glu__decode"
HDR = open("cdna_kernels/" + KN + ".s.ref").read().split("; Override launch")[0]

def f2u(x): return struct.unpack("<I", struct.pack("<f", x))[0]

DEF = dict(PRE=10, NF=16, LA=16, EAG=2, gran=4096, scope="wg", fK="nt", fV="nt", fWQ="nt", fG="", fWO="nt",
           GI=40, CNTG=10, STAMP=False, EXPISS=16, hmap="xcd", SLEEP=1)

WS_O, WS_ML, WS_Y, WS_G = 0, 0x10000, 0x20000, 0x40000
GROW = 176 * 64
L_XN, L_QP, L_GP, L_MX, L_LS, L_OP, L_WO = 0, 8192, 10240, 10496, 10512, 10752, 12800
LDS_BYTES = 12800 + 16384
OOB = 0x80000000

def gen(**kw):
    P = dict(DEF); P.update(kw)
    b = Builder(); e = b.e
    PRE, NF, LA = P["PRE"], P["NF"], P["LA"]
    nst = [0]
    def stamp():
        if P["STAMP"]:
            k = nst[0]; nst[0] += 1
            assert k < 7
            e(f"s_memrealtime s[{86+2*k}:{87+2*k}]"); b.smem = True
    sX, sK, sWQ, sV, sWO, sG, sU, sD, sWS, sO, sDB = [f"s[{i}:{i+3}]" for i in range(8, 52, 4)]
    e(f"{KN}_kernel:")
    stamp()
    e("""s_load_dwordx2 s[8:9], s[0:1], 0
    s_load_dwordx2 s[12:13], s[0:1], 8
    s_load_dwordx2 s[16:17], s[0:1], 24
    s_load_dwordx2 s[20:21], s[0:1], 16
    s_load_dwordx8 s[64:71], s[0:1], 32
    s_load_dwordx8 s[72:79], s[0:1], 64
    s_cmp_ge_u32 s2, 256
    s_cbranch_scc1 L_end
    v_lshrrev_b32 v3, 6, v0
    v_and_b32 v0, 63, v0
    s_and_b32 s7, s2, 7
    v_readfirstlane_b32 s3, v3
    s_lshr_b32 s6, s2, 3""")
    if P["hmap"] == "xcd":
        e("s_lshl_b32 s4, s7, 2\ns_lshr_b32 s5, s6, 3\ns_add_u32 s4, s4, s5\ns_and_b32 s5, s6, 7")
    else:
        e("s_and_b32 s4, s6, 0x18\ns_add_u32 s4, s4, s7\ns_and_b32 s5, s6, 7")
    gran = P["gran"]; G = gran // 1024
    if P["scope"] == "wg":
        e("s_lshl_b32 s52, s5, 18"); stride = gran * 4
    else:
        e(f"s_mul_i32 s52, s5, {gran*4}"); stride = gran * 32
    e(f"""s_lshl_b32 s53, s4, 21
    s_add_u32 s52, s52, s53
    s_mul_i32 s53, s3, {gran}
    s_add_u32 s52, s52, s53
    v_lshlrev_b32 v62, 4, v0
    v_add_u32 v1, s52, v62
    s_mov_b32 s10, 1024
    s_mov_b32 s11, 0x20000
    s_mov_b32 s14, 0x4000000
    s_mov_b32 s15, 0x20000
    s_mov_b32 s18, 0x400000
    s_mov_b32 s19, 0x20000
    s_mov_b32 s22, 0x4000000
    s_mov_b32 s23, 0x20000
    s_lshl_b32 s52, s3, 20
    s_lshl_b32 s53, s4, 8
    s_add_u32 s52, s52, s53
    v_lshrrev_b32 v61, 4, v0
    v_and_b32 v60, 15, v0
    v_lshlrev_b32 v2, 18, v61
    v_lshl_add_u32 v2, v60, 4, v2
    v_add_u32 v2, s52, v2
    s_mov_b32 s57, 0
    s_waitcnt lgkmcnt(0)""")
    b.smem = False
    def kv_off(i):
        g = i // G; j = i % G
        return g * stride + (j // 4) * 4096, (j % 4) * 1024
    cur = {"K": None, "V": None}
    def issue_kv(t, i):
        hi, lo = kv_off(i)
        sreg = "s56" if t == "K" else "s58"
        if cur[t] != hi:
            e(f"s_mov_b32 {sreg}, {hi}"); cur[t] = hi
        if t == "K":
            r = 128 + 4 * (i % 32)
            b.vm(f"K{i}", f"buffer_load_dwordx4 v[{r}:{r+3}], v1, {sK}, {sreg} offen offset:{lo} {P['fK']}")
        else:
            b.vm(f"V{i}", f"buffer_load_dwordx4 a[{4*i}:{4*i+3}], v1, {sV}, {sreg} offen offset:{lo} {P['fV']}")
    def issue_wq(i):
        if i: e("s_add_u32 s57, s57, 0x2000")
        b.vm(f"W{i}", f"buffer_load_dwordx4 a[{128+4*i}:{131+4*i}], v2, {sWQ}, s57 offen {P['fWQ']}")
    seq = [("K", i) for i in range(32)] + [("V", i) for i in range(NF)] + [("K", i) for i in range(32, 64)] + [("V", i) for i in range(NF, 64)]
    pos = {f"{t}{i}": n for n, (t, i) in enumerate(seq)}
    st = {"n": 0, "kfree": 32}
    def issue_next(cnt=1):
        for _ in range(cnt):
            if st["n"] >= len(seq): return
            t, i = seq[st["n"]]
            if t == "K" and i >= st["kfree"]: return
            if t == "V" and i >= 32 and not st.get("wqdone"): return
            issue_kv(t, i); st["n"] += 1
    def issue_upto(p):
        while st["n"] <= p and st["n"] < len(seq):
            n0 = st["n"]; issue_next()
            if st["n"] == n0: break

    b.vm("x", f"buffer_load_dwordx4 v[120:123], v62, {sX}, 0 offen")
    for i in range(PRE):
        issue_wq(i); issue_next()
    e(f"""s_mov_b32 s24, s64
    s_mov_b32 s25, s65
    s_mov_b32 s26, 0x400000
    s_mov_b32 s27, 0x20000
    s_mul_i32 s7, s7, 22
    s_add_u32 s7, s7, s6
    s_cmp_lt_u32 s6, 22
    s_cselect_b32 s6, s7, 0xff
    s_cmp_lt_u32 s6, 172
    s_cselect_b32 s30, 1409024, 0
    s_cselect_b32 s59, 0, {OOB}
    s_mov_b32 s28, s68
    s_mov_b32 s29, s69
    s_mov_b32 s31, 0x20000
    s_mov_b32 s32, s70
    s_mov_b32 s33, s71
    s_mov_b32 s34, s30
    s_mov_b32 s35, 0x20000
    s_mov_b32 s36, s72
    s_mov_b32 s37, s73
    s_mov_b32 s38, s30
    s_mov_b32 s39, 0x20000
    s_mov_b32 s40, s78
    s_mov_b32 s41, s79
    s_mov_b32 s42, 0x10000000
    s_mov_b32 s43, 0x20000
    s_mov_b32 s44, s74
    s_mov_b32 s45, s75
    s_mov_b32 s46, 1024
    s_mov_b32 s47, 0x20000
    s_mov_b32 s48, s76
    s_mov_b32 s49, s77
    s_mov_b32 s50, 256
    s_mov_b32 s51, 0x20000
    s_mov_b32 s60, {f2u(128**-0.5 * math.log2(math.e)):#x}
    s_mov_b32 s61, {f2u(-math.log2(math.e)):#x}""")
    e(f"""s_lshl_b32 s52, s3, 7
    v_add_u32 v3, s52, v0
    s_movk_i32 s53, 2752
    v_mul_u32_u24 v3, s53, v3
    s_lshl_b32 s52, s6, 4
    v_add_u32 v3, s52, v3
    s_mov_b32 s54, {64*2752}""")
    b.vm("g0", f"buffer_load_dwordx4 v[96:99], v3, {sG}, 0 offen {P['fG']}")
    b.vm("g1", f"buffer_load_dwordx4 v[100:103], v3, {sG}, s54 offen {P['fG']}")
    b.vm("u0", f"buffer_load_dwordx4 v[104:107], v3, {sU}, 0 offen {P['fG']}")
    b.vm("u1", f"buffer_load_dwordx4 v[108:111], v3, {sU}, s54 offen {P['fG']}")
    e(f"""s_lshl_b32 s62, s4, 3
    s_add_u32 s62, s62, s5
    s_lshl_b32 s52, s5, 2
    s_add_u32 s52, s52, s3
    s_lshl_b32 s52, s52, 11
    s_lshl_b32 s53, s4, 6
    s_add_u32 s63, s52, s53
    s_add_u32 s63, s63, {WS_Y}
    s_lshl_b32 s52, s62, 8
    s_lshl_b32 s53, s3, 6
    s_add_u32 s52, s52, s53
    s_add_u32 s52, s52, {WS_O - 64 + (1 << 32) if WS_O < 64 else WS_O - 64:#x}
    s_lshl_b32 s53, s62, 4
    s_add_u32 s53, s53, {WS_ML - 128}
    v_mov_b32 v3, {OOB:#x}
    v_mov_b32 v40, s53
    v_cmp_gt_u32 vcc, 9, v0
    v_cndmask_b32 v3, v3, v40, vcc
    v_mov_b32 v40, s52
    v_cmp_gt_u32 vcc, 8, v0
    v_cndmask_b32 v3, v3, v40, vcc
    v_mov_b32 v40, s63
    v_cmp_gt_u32 vcc, 4, v0
    v_cndmask_b32 v3, v3, v40, vcc
    v_add_u32 v3, v3, v62
    v_mov_b32 v16, -1
    v_mov_b32 v17, -1
    v_mov_b32 v18, -1
    v_mov_b32 v19, -1""")
    b.vm("clr", f"buffer_store_dwordx4 v[16:19], v3, {sWS}, 0 offen sc1")
    e("""v_and_b32 v40, 1, v60
    v_lshlrev_b32 v40, 4, v40
    v_mov_b32 v41, 0xffff
    v_lshlrev_b32 v41, v40, v41
    v_lshrrev_b32 v42, 1, v60""")
    for k in range(4):
        e(f"v_cmp_eq_u32 vcc, {k}, v42\nv_cndmask_b32 v{4+k}, 0, v41, vcc")
    def wave_sum(v):
        for s in (8, 4, 2, 1):
            e(f"v_add_f32_dpp {v}, {v}, {v} row_ror:{s} row_mask:0xf bank_mask:0xf")
        e(f"v_add_f32_dpp {v}, {v}, {v} row_bcast:15 row_mask:0xa bank_mask:0xf")
        e(f"v_add_f32_dpp {v}, {v}, {v} row_bcast:31 row_mask:0xc bank_mask:0xf")
    b.vneed("x")
    for k in range(4):
        e(f"v_lshlrev_b32 v{40+2*k}, 16, v{120+k}\nv_and_b32 v{41+2*k}, 0xffff0000, v{120+k}")
    e("""v_add_f32 v48, v40, v41
    v_add_f32 v49, v42, v43
    v_add_f32 v50, v44, v45
    v_add_f32 v51, v46, v47
    v_add_f32 v48, v48, v49
    v_add_f32 v50, v50, v51
    v_add_f32 v48, v48, v50""")
    wave_sum("v48")
    e("v_mul_f32 v48, 0x3b000000, v48\nv_readlane_b32 s52, v48, 63")
    for k in range(8): e(f"v_subrev_f32 v{52+k}, s52, v{40+k}")
    e("v_mul_f32 v48, v52, v52\nv_mul_f32 v49, v53, v53")
    for k in range(2, 8): e(f"v_fmac_f32 v{48+(k&1)}, v{52+k}, v{52+k}")
    e("v_add_f32 v48, v48, v49")
    wave_sum("v48")
    e("""v_mul_f32 v48, 0x3b000000, v48
    v_readlane_b32 s53, v48, 63
    v_cvt_pk_bf16_f32 v50, s52, s52
    v_cvt_pk_bf16_f32 v48, s53, s53
    v_lshlrev_b32 v50, 16, v50
    v_lshlrev_b32 v48, 16, v48
    v_add_f32 v48, 0x3727c5ac, v48
    v_cvt_pk_bf16_f32 v48, v48, v48
    v_lshlrev_b32 v48, 16, v48
    v_sqrt_f32 v48, v48
    v_cvt_pk_bf16_f32 v48, v48, v48
    v_lshlrev_b32 v48, 16, v48
    v_rcp_f32 v49, v48""")
    for k in range(8): e(f"v_sub_f32 v{40+k}, v{40+k}, v50")
    for k in range(4): e(f"v_cvt_pk_bf16_f32 v{120+k}, v{40+2*k}, v{41+2*k}")
    for k in range(4):
        e(f"v_lshlrev_b32 v{40+2*k}, 16, v{120+k}\nv_and_b32 v{41+2*k}, 0xffff0000, v{120+k}")
    for k in range(8): e(f"v_mul_f32 v{52+k}, v{40+k}, v49")
    for k in range(8): e(f"v_fma_f32 v{40+k}, -v{52+k}, v48, v{40+k}")
    for k in range(8): e(f"v_fmac_f32 v{52+k}, v{40+k}, v49")
    for k in range(8): e(f"v_cvt_pk_bf16_f32 v{40+k}, v{52+k}, v{52+k}")
    e(f"""s_lshl_b32 s52, s3, 11
    v_lshl_add_u32 v3, v62, 1, s52""")
    b.ds("xw0", f"ds_write_b128 v3, v[40:43] offset:{L_XN}")
    b.ds("xw1", f"ds_write_b128 v3, v[44:47] offset:{L_XN+16}")
    e(f"""s_mul_i32 s52, s3, {2048+512}
    v_lshl_add_u32 v3, v61, 7, s52
    v_lshl_add_u32 v48, v0, 2, s52""")
    b.dneed()
    for k in range(8):
        b.ds(f"xr{k}", f"ds_read_b128 v[{64+4*k}:{67+4*k}], v3 offset:{L_XN+16*k}")
    b.ds("xg0", f"ds_read_b32 v58, v48 offset:{L_XN}")
    b.ds("xg1", f"ds_read_b32 v59, v48 offset:{L_XN+256}")
    stamp()
    e(f"""s_lshl_b32 s52, s6, 13
    s_lshl_b32 s53, s3, 8
    s_add_u32 s52, s52, s53
    v_lshlrev_b32 v3, 10, v61
    v_lshl_add_u32 v3, v60, 4, v3
    v_add_u32 v3, s52, v3
    s_movk_i32 s53, 4096""")
    def issue_down():
        b.vm("d0", f"buffer_load_dwordx4 v[112:115], v3, {sD}, 0 offen {P['fWO']}")
        b.vm("d1", f"buffer_load_dwordx4 v[116:119], v3, {sD}, s53 offen {P['fWO']}")
    issue_down()
    e(f"""s_lshl_b32 s52, s4, 17
    s_lshl_b32 s53, s3, 15
    s_add_u32 s52, s52, s53
    s_lshl_b32 s53, s5, 7
    s_add_u32 s52, s52, s53
    v_lshrrev_b32 v3, 3, v0
    v_lshlrev_b32 v3, 10, v3
    v_and_b32 v48, 7, v0
    v_lshl_add_u32 v3, v48, 4, v3
    v_add_u32 v63, s52, v3
    s_lshl_b32 s55, s3, 12
    s_add_u32 s55, s55, {L_WO}""")
    def issue_wo(t):
        e(f"s_mov_b32 m0, s55\ns_mov_b32 s53, {8192*t}")
        b.vm(f"wo{t}", f"buffer_load_dwordx4 v63, {sWO}, s53 offen {P['fWO']} lds")
        if t < 3: e("s_add_u32 s55, s55, 1024")
    def ands(src, buf):
        for k in range(4): e(f"v_and_b32 v{16+4*buf+k}, {src}, v{4+k}")
    b.dneed("xr0")
    ands("v64", 0)
    for i in range(32):
        if i + 1 < 32:
            if (i + 1) % 4 == 0: b.dneed(f"xr{(i+1)//4}")
            ands(f"v{65+i}", (i + 1) & 1)
        b.vneed(f"W{i}")
        A = 16 + 4 * (i & 1)
        e(f"v_mfma_f32_16x16x32_bf16 v[12:15], v[{A}:{A+3}], a[{128+4*i}:{131+4*i}], {'0' if i == 0 else 'v[12:15]'}")
        if i + PRE < 32:
            issue_wq(i + PRE); issue_next()
        else:
            issue_next(2)
            if 28 <= i: issue_wo(i - 28)
    st["wqdone"] = True
    issue_upto(pos[f"V{NF-1}"] if NF else pos["K31"])
    stamp()
    b.dneed()
    e("""v_and_b32 v40, 0xffff, v58
    v_and_b32 v41, 0xffff0000, v58
    v_and_b32 v42, 0xffff, v59
    v_and_b32 v43, 0xffff0000, v59""")
    b.vneed("u1")
    for t in range(2):
        for m in range(2):
            for k in range(4):
                W = 96 + 8 * m + 4 * t + k
                for hf in range(2):
                    acc = 64 + 8 * m + 2 * k + hf
                    e(f"v_dot2_f32_bf16 v{acc}, v{W}, v{40+2*t+hf}, {'0' if t == 0 else 'v%d' % acc}")
    e(f"s_lshl_b32 s52, s3, 9\nv_add_u32 v3, s52, v62\ns_mov_b64 exec, 0xffffffff")
    b.ds("qw", f"ds_write_b128 v3, v[12:15] offset:{L_QP}")
    e("s_mov_b64 exec, -1")
    for j in range(8): e(f"v_permlane32_swap_b32 v{64+j}, v{72+j}")
    for j in range(8): e(f"v_add_f32 v{64+j}, v{64+j}, v{72+j}")
    for j in range(4): e(f"v_permlane16_swap_b32 v{64+j}, v{68+j}")
    for j in range(4): e(f"v_add_f32 v{64+j}, v{64+j}, v{68+j}")
    for s in (8, 4, 2, 1):
        for j in range(4): e(f"v_add_f32_dpp v{64+j}, v{64+j}, v{64+j} row_ror:{s} row_mask:0xf bank_mask:0xf")
    e(f"s_lshl_b32 s52, s3, 6\nv_lshl_add_u32 v3, v61, 2, s52\ns_mov_b32 exec_lo, 0x00010001\ns_mov_b32 exec_hi, 0x00010001")
    for j in range(4): b.ds("gw", f"ds_write_b32 v3, v{64+j} offset:{L_GP+16*j}")
    e("s_mov_b64 exec, -1")
    e("v_lshlrev_b32 v3, 4, v60\nv_lshlrev_b32 v48, 4, v61")
    b.dneed()
    e("s_barrier")
    for w in range(4):
        b.ds(f"qr{w}", f"ds_read_b128 v[{64+8*w}:{67+8*w}], v3 offset:{L_QP+512*w}")
        b.ds(f"qr{w}", f"ds_read_b128 v[{68+8*w}:{71+8*w}], v3 offset:{L_QP+512*w+256}")
    for w in range(4):
        b.ds(f"gr{w}", f"ds_read_b128 v[{96+4*w}:{99+4*w}], v48 offset:{L_GP+64*w}")
    b.dneed("qr1")
    for k in range(8): e(f"v_add_f32 v{64+k}, v{64+k}, v{72+k}")
    b.dneed("qr3")
    for k in range(8): e(f"v_add_f32 v{80+k}, v{80+k}, v{88+k}")
    for k in range(8): e(f"v_add_f32 v{64+k}, v{64+k}, v{80+k}")
    for k in range(4): e(f"v_cvt_pk_bf16_f32 v{8+k}, v{64+2*k}, v{65+2*k}")
    b.dneed("gr3")
    for k in range(4): e(f"v_add_f32 v{96+k}, v{96+k}, v{100+k}\nv_add_f32 v{104+k}, v{104+k}, v{108+k}")
    for k in range(4): e(f"v_add_f32 v{96+k}, v{96+k}, v{104+k}")
    e("""v_cvt_pk_bf16_f32 v96, v96, v97
    v_cvt_pk_bf16_f32 v98, v98, v99
    v_lshlrev_b32 v40, 16, v96
    v_and_b32 v41, 0xffff0000, v96
    v_lshlrev_b32 v42, 16, v98
    v_and_b32 v43, 0xffff0000, v98
    v_mul_f32 v40, s61, v40
    v_mul_f32 v41, s61, v41
    v_exp_f32 v40, v40
    v_exp_f32 v41, v41
    v_add_f32 v40, 1.0, v40
    v_add_f32 v41, 1.0, v41
    v_rcp_f32 v40, v40
    v_rcp_f32 v41, v41
    v_cvt_pk_bf16_f32 v40, v40, v41
    v_and_b32 v41, 0xffff0000, v40
    v_lshlrev_b32 v40, 16, v40
    v_mul_f32 v40, v40, v42
    v_mul_f32 v41, v41, v43
    v_cvt_pk_bf16_f32 v40, v40, v40
    v_cvt_pk_bf16_f32 v41, v41, v41""")
    ands("v40", 0); ands("v41", 1)
    b.vneed("d1")
    e("v_mfma_f32_16x16x32_bf16 v[12:15], v[16:19], v[112:115], 0")
    e("v_mfma_f32_16x16x32_bf16 v[12:15], v[20:23], v[116:119], v[12:15]")
    e(f"""s_mul_i32 s52, s3, {8*GROW}
    s_lshl_b32 s53, s6, 6
    s_add_u32 s52, s52, s53
    s_add_u32 s52, s52, {WS_G}
    s_add_u32 s52, s52, s59
    v_lshrrev_b32 v3, 1, v60
    v_mul_u32_u24 v3, {GROW}, v3
    v_and_b32 v48, 1, v60
    v_lshl_add_u32 v3, v48, 5, v3
    v_lshl_add_u32 v3, v61, 4, v3
    v_add_u32 v3, s52, v3
    s_mov_b64 exec, 0xffffffff""")
    b.vm("gst", f"buffer_store_dwordx4 v[12:15], v3, {sWS}, 0 offen sc1")
    e("s_mov_b64 exec, -1")
    e("v_mov_b32 v40, 0xff800000")
    stamp()
    for j in range(16):
        b.vneed(f"K{4*j+3}")
        for k in range(4):
            for u in range(4):
                i = 4 * j + u; r = 128 + 4 * (i % 32) + k
                e(f"v_dot2_f32_bf16 v{64+i}, v{r}, v{8+k}, {'0' if k == 0 else 'v%d' % (64+i)}")
        st["kfree"] = 32 + 4 * j + 4
        n0 = st["n"]
        issue_upto(pos[f"K{4*j+3}"] + LA)
        if j < 8 and st["n"] - n0 < P["EAG"]: issue_next(P["EAG"] - (st["n"] - n0))
        for s in (8, 4, 2, 1):
            for u in range(4):
                i = 64 + 4 * j + u
                e(f"v_add_f32_dpp v{i}, v{i}, v{i} row_ror:{s} row_mask:0xf bank_mask:0xf")
        e(f"v_max3_f32 v40, v{64+4*j}, v{65+4*j}, v40\nv_max3_f32 v40, v{66+4*j}, v{67+4*j}, v40")
        if j == P["CNTG"]:
            b.vneed("gst"); b.vneed("clr")
            e(f"""s_barrier
            s_cmp_eq_u32 s3, 0
            s_cselect_b32 s52, 0, {OOB}
            v_mov_b32 v3, s52
            v_mov_b32 v41, 1
            s_mov_b64 exec, 1""")
            b.vm("cntadd", f"buffer_atomic_add v41, v3, {sDB}, 0 offen")
            e("s_mov_b64 exec, -1")
    stamp()
    e("""v_mov_b32 v41, v40
    v_permlane16_swap_b32 v41, v40
    v_max_f32 v40, v40, v41
    v_mov_b32 v41, v40
    v_permlane32_swap_b32 v41, v40
    v_max_f32 v40, v40, v41
    s_lshl_b32 s52, s3, 2
    v_mov_b32 v3, s52
    v_mov_b32 v48, 0
    s_mov_b64 exec, 1""")
    b.ds("mw", f"ds_write_b32 v3, v40 offset:{L_MX}")
    e("s_mov_b64 exec, -1")
    issue_next(2)
    b.vneed("wo3")
    b.dneed()
    e("s_barrier")
    b.ds("mr", f"ds_read_b128 v[44:47], v48 offset:{L_MX}")
    e(f"""v_lshlrev_b32 v49, 3, v61
    v_bfe_u32 v50, v0, 2, 2
    v_add_u32 v49, v49, v50
    v_lshlrev_b32 v49, 7, v49
    v_and_b32 v50, 3, v0
    v_lshl_add_u32 v49, v50, 3, v49
    s_lshl_b32 s52, s3, 5
    v_add_u32 v49, s52, v49""")
    for kk in range(4):
        for hh in range(2):
            r = 24 + 4 * kk + 2 * hh
            b.ds("wtr", f"ds_read_b64_tr_b16 v[{r}:{r+1}], v49 offset:{L_WO+(32*kk+4*hh)*128}")
    b.dneed("mr")
    e("""v_max3_f32 v40, v44, v45, v46
    v_max_f32 v40, v40, v47
    v_mul_f32 v56, s60, v40
    v_sub_f32 v41, 0, v56
    v_mov_b32 v42, 0
    v_mov_b32 v43, 0""")
    b.vm("cnt", f"buffer_load_dword v63, v48, {sDB}, 0 offen sc1")
    for j in range(16):
        for u in range(4): e(f"v_fma_f32 v{64+4*j+u}, v{64+4*j+u}, s60, v41")
        for u in range(4): e(f"v_exp_f32 v{64+4*j+u}, v{64+4*j+u}")
        for u in range(4): e(f"v_add_f32 v{42+(u&1)}, v{42+(u&1)}, v{64+4*j+u}")
        for u in range(4): e(f"v_cvt_pk_bf16_f32 v{64+4*j+u}, v{64+4*j+u}, v{64+4*j+u}")
        if P["EXPISS"] and (4 * j + 4) % P["EXPISS"] == 0: issue_next(1)
    e("""v_add_f32 v42, v42, v43
    v_mov_b32 v43, v42
    v_permlane16_swap_b32 v43, v42
    v_add_f32 v42, v42, v43
    v_mov_b32 v43, v42
    v_permlane32_swap_b32 v43, v42
    v_add_f32 v42, v42, v43
    s_mov_b64 exec, 1""")
    b.ds("lw", f"ds_write_b32 v3, v42 offset:{L_LS}")
    e("s_mov_b64 exec, -1")
    b.dneed()
    e("s_barrier")
    b.ds("lr", f"ds_read_b128 v[44:47], v48 offset:{L_LS}")
    e(f"""s_lshl_b32 s52, s62, 4
    s_add_u32 s52, s52, {WS_ML}
    s_cmp_eq_u32 s3, 0
    s_cselect_b32 s52, s52, {OOB}
    v_mov_b32 v3, s52""")
    b.dneed()
    e("""v_add_f32 v44, v44, v45
    v_add_f32 v46, v46, v47
    v_add_f32 v45, v44, v46
    v_min_u32 v44, -2, v56
    v_min_u32 v45, -2, v45
    s_mov_b64 exec, 1""")
    b.vm("mlst", f"buffer_store_dwordx2 v[44:45], v3, {sWS}, 0 offen sc1")
    e("s_mov_b64 exec, -1")
    e(f"""s_lshl_b32 s52, s5, 2
    s_add_u32 s52, s52, s3
    s_cmp_eq_u32 s52, s4
    s_cselect_b32 s80, 0, {OOB}
    s_mov_b32 s81, 0x100000""")
    def gathers():
        b.vneed("cnt")
        e(f"""v_readfirstlane_b32 s52, v63
        s_cmp_ge_u32 s52, 256
        s_cbranch_scc1 L_cnt_ok
        L_cnt_spin:
        s_sleep 8
        buffer_load_dword v63, v48, {sDB}, 0 offen sc1
        s_sub_u32 s81, s81, 1
        s_cbranch_scc1 L_end
        s_waitcnt vmcnt(0)
        v_readfirstlane_b32 s52, v63
        s_cmp_ge_u32 s52, 256
        s_cbranch_scc0 L_cnt_spin
        L_cnt_ok:
        s_lshl_b32 s52, s4, 7
        s_add_u32 s52, s52, {WS_ML}
        v_and_b32 v3, 7, v0
        v_lshl_add_u32 v57, v3, 4, s52""")
        b.vm("ml", f"buffer_load_dwordx2 v[172:173], v57, {sWS}, 0 offen sc1")
        e(f"""s_mul_i32 s52, s4, {GROW}
        s_add_u32 s52, s52, {WS_G}
        s_add_u32 s52, s52, s80
        v_add_u32 v3, s52, v62
        v_mov_b32 v49, {OOB:#x}
        v_cmp_gt_u32 vcc, 48, v0
        v_cndmask_b32 v49, v49, v3, vcc
        s_movk_i32 s53, 4096
        s_movk_i32 s54, 8192""")
        for t in range(11):
            so = ["0", "s53", "s54"][t // 4]
            b.vm("gg", f"buffer_load_dwordx4 v[{128+4*t}:{131+4*t}], {'v49' if t == 10 else 'v3'}, {sWS}, {so} offen offset:{(t%4)*1024} sc1")
        e(f"""s_lshl_b32 s52, s4, 5
        s_add_u32 s52, s52, s80
        v_and_b32 v3, 3, v0
        v_lshlrev_b32 v3, 3, v3
        v_lshl_add_u32 v3, v61, 1, v3
        v_add_u32 v55, s52, v3""")
        b.vm("xf", f"buffer_load_ushort v174, v55, {sX}, 0 offen")
    def reduce4(r):
        e(f"""v_permlane32_swap_b32 v{r}, v{r+2}
        v_permlane32_swap_b32 v{r+1}, v{r+3}
        v_add_f32 v{r}, v{r}, v{r+2}
        v_add_f32 v{r+1}, v{r+1}, v{r+3}
        v_permlane16_swap_b32 v{r}, v{r+1}
        v_add_f32 v{r}, v{r}, v{r+1}
        v_add_f32_dpp v{r}, v{r}, v{r} row_ror:4 row_mask:0xf bank_mask:0xf
        v_add_f32_dpp v{r}, v{r}, v{r} row_ror:8 row_mask:0xf bank_mask:0xf""")
    def use_gathers():
        b.vneed("xf")
        e(f"""L_ml_chk:
        v_max_u32 v3, v172, v173
        v_cmp_eq_u32 vcc, -1, v3
        s_cbranch_vccz L_ml_ok
        s_sleep 4
        buffer_load_dwordx2 v[172:173], v57, {sWS}, 0 offen sc1
        s_sub_u32 s81, s81, 1
        s_cbranch_scc1 L_end
        s_waitcnt vmcnt(0)
        s_branch L_ml_chk
        L_ml_ok:
        v_max_f32_dpp v44, v172, v172 row_half_mirror row_mask:0xf bank_mask:0xf
        v_max_f32_dpp v44, v44, v44 quad_perm:[2,3,0,1] row_mask:0xf bank_mask:0xf
        v_max_f32_dpp v44, v44, v44 quad_perm:[1,0,3,2] row_mask:0xf bank_mask:0xf
        v_sub_f32 v45, v172, v44
        v_sub_f32 v46, v56, v44
        v_exp_f32 v45, v45
        v_exp_f32 v46, v46
        v_mul_f32 v45, v45, v173
        v_add_f32_dpp v45, v45, v45 row_half_mirror row_mask:0xf bank_mask:0xf
        v_add_f32_dpp v45, v45, v45 quad_perm:[2,3,0,1] row_mask:0xf bank_mask:0xf
        v_add_f32_dpp v45, v45, v45 quad_perm:[1,0,3,2] row_mask:0xf bank_mask:0xf
        v_rcp_f32 v45, v45
        v_mul_f32 v54, v45, v46
        s_cmp_eq_u32 s80, 0
        s_cbranch_scc0 L_nog""")
        for t in range(1, 11):
            for k in range(4): e(f"v_add_f32 v{128+k}, v{128+k}, v{128+4*t+k}")
        reduce4(128)
        e("""v_cvt_pk_bf16_f32 v128, v128, v128
        v_lshlrev_b32 v128, 16, v128
        v_mul_f32 v129, s61, v128
        v_exp_f32 v129, v129
        v_add_f32 v129, 1.0, v129
        v_rcp_f32 v129, v129
        v_mul_f32 v128, v128, v129
        v_cvt_pk_bf16_f32 v128, v128, v128
        v_lshlrev_b32 v53, 16, v128
        v_lshlrev_b32 v52, 16, v174
        L_nog:""")
        e(f"""s_lshl_b32 s52, s3, 9
        v_lshlrev_b32 v51, 5, v60
        v_lshl_add_u32 v51, v61, 4, v51
        v_add_u32 v51, s52, v51
        v_lshlrev_b32 v50, 3, v0
        s_lshl_b32 s52, s62, 8
        s_cmp_eq_u32 s3, 0
        s_cselect_b32 s52, s52, {OOB}
        v_lshl_add_u32 v49, v0, 2, s52
        s_lshl_b32 s52, s4, 11
        v_lshlrev_b32 v48, 8, v60
        v_lshl_add_u32 v48, v61, 4, v48
        v_add_u32 v48, s52, v48
        v_mov_b32 v3, {OOB:#x}
        v_cmp_gt_u32 vcc, 8, v60
        v_cndmask_b32 v48, v3, v48, vcc
        v_lshl_add_u32 v47, v61, 4, s63
        s_add_u32 s52, s52, {WS_Y}
        v_add_u32 v46, s52, v62""")
    ands("v64", 0)
    used = False
    for i in range(64):
        if i + 1 < 64: ands(f"v{65+i}", (i + 1) & 1)
        b.vneed(f"V{i}")
        A = 16 + 4 * (i & 1)
        e(f"v_mfma_f32_16x16x32_bf16 v[12:15], v[{A}:{A+3}], a[{4*i}:{4*i+3}], {'0' if i == 0 else 'v[12:15]'}")
        if i == P["GI"]:
            gathers(); gpos = st["n"]
        issue_upto(pos[f"V{i}"] + LA)
        if i > P["GI"] and not used and (pos[f"V{i}"] >= gpos - 1 or i == 62):
            use_gathers(); used = True
    assert used and st["n"] == len(seq)
    stamp()
    e("s_mov_b64 exec, 0xffffffff")
    b.ds("ow", f"ds_write_b128 v51, v[12:15] offset:{L_OP}")
    e("s_mov_b64 exec, -1")
    b.dneed()
    e("s_barrier")
    for w in range(4): b.ds(f"or{w}", f"ds_read_b64 v[{176+2*w}:{177+2*w}], v50 offset:{L_OP+512*w}")
    b.dneed("or1")
    e("v_add_f32 v176, v176, v178\nv_add_f32 v177, v177, v179")
    b.dneed("or3")
    e("""v_add_f32 v180, v180, v182
    v_add_f32 v181, v181, v183
    v_add_f32 v176, v176, v180
    v_add_f32 v177, v177, v181
    v_mul_f32 v176, v176, v54
    v_mul_f32 v177, v177, v54
    v_cvt_pk_bf16_f32 v176, v176, v177
    v_min_u32 v176, -2, v176
    v_mov_b32_dpp v177, v176 quad_perm:[1,1,1,1] row_mask:0xf bank_mask:0xf
    v_mov_b32_dpp v178, v176 quad_perm:[2,2,2,2] row_mask:0xf bank_mask:0xf
    v_mov_b32_dpp v179, v176 quad_perm:[3,3,3,3] row_mask:0xf bank_mask:0xf
    s_mov_b32 exec_lo, 0x11111111
    s_mov_b32 exec_hi, 0x11111111""")
    e(f"buffer_store_dwordx4 v[176:179], v49, {sWS}, 0 offen offset:{WS_O} sc1")
    e("s_mov_b64 exec, -1")
    e("L_poll1:")
    for kk in range(4):
        e(f"buffer_load_dwordx4 v[{180+4*kk}:{183+4*kk}], v48, {sWS}, 0 offen offset:{WS_O+64*kk} sc1")
    e("""s_sub_u32 s81, s81, 1
    s_cbranch_scc1 L_end
    s_waitcnt vmcnt(3)
    v_max3_u32 v3, v180, v181, v182
    s_waitcnt vmcnt(2)
    v_max3_u32 v3, v3, v183, v184
    v_max3_u32 v40, v185, v186, v187
    s_waitcnt vmcnt(1)
    v_max3_u32 v3, v3, v188, v189
    v_max3_u32 v40, v40, v190, v191
    s_waitcnt vmcnt(0)
    v_max3_u32 v3, v3, v192, v193
    v_max3_u32 v40, v40, v194, v195
    v_max_u32 v3, v3, v40
    v_cmp_eq_u32 vcc, -1, v3
    s_and_b64 exec, exec, vcc
    s_cbranch_scc0 L_got1""")
    if P["SLEEP"]: e(f"s_sleep {P['SLEEP']}")
    e("""s_branch L_poll1
    L_got1:
    s_mov_b64 exec, -1""")
    for kk in range(4):
        e(f"v_mfma_f32_16x16x32_bf16 v[12:15], v[{24+4*kk}:{27+4*kk}], v[{180+4*kk}:{183+4*kk}], {'0' if kk == 0 else 'v[12:15]'}")
    for s in (4, 2, 1):
        for r in range(4): e(f"v_add_f32_dpp v{12+r}, v{12+r}, v{12+r} row_shl:{s} row_mask:0xf bank_mask:0xf bound_ctrl:0")
    for r in range(4): e(f"v_min_u32 v{12+r}, -2, v{12+r}")
    e(f"""s_mov_b32 exec_lo, 0x00010001
    s_mov_b32 exec_hi, 0x00010001
    buffer_store_dwordx4 v[12:15], v47, {sWS}, 0 offen sc1
    s_mov_b64 exec, -1
    s_cmp_eq_u32 s80, 0
    s_cbranch_scc0 L_fin
    L_poll2:
    buffer_load_dwordx4 v[180:183], v46, {sWS}, 0 offen sc1
    buffer_load_dwordx4 v[184:187], v46, {sWS}, 0 offen offset:1024 sc1
    s_sub_u32 s81, s81, 1
    s_cbranch_scc1 L_end
    s_waitcnt vmcnt(1)
    v_max3_u32 v3, v180, v181, v182
    s_waitcnt vmcnt(0)
    v_max3_u32 v40, v184, v185, v186
    v_max3_u32 v3, v3, v183, v187
    v_max_u32 v3, v3, v40
    v_cmp_eq_u32 vcc, -1, v3
    s_and_b64 exec, exec, vcc
    s_cbranch_scc0 L_got2""")
    if P["SLEEP"]: e(f"s_sleep {P['SLEEP']}")
    e("""s_branch L_poll2
    L_got2:
    s_mov_b64 exec, -1""")
    for k in range(4): e(f"v_add_f32 v{180+k}, v{180+k}, v{184+k}")
    reduce4(180)
    e(f"""v_cvt_pk_bf16_f32 v180, v180, v180
    v_lshlrev_b32 v180, 16, v180
    v_mul_f32 v180, v180, v53
    v_cvt_pk_bf16_f32 v180, v180, v180
    v_lshlrev_b32 v180, 16, v180
    v_add_f32 v180, v180, v52
    v_cvt_pk_bf16_f32 v180, v180, v180
    s_mov_b32 exec_lo, 0x000f000f
    s_mov_b32 exec_hi, 0x000f000f
    buffer_store_short v180, v55, {sO}, 0 offen
    L_fin:""")
    if P["STAMP"]:
        e("s_mov_b64 exec, -1\ns_waitcnt vmcnt(0)")
        stamp()
        e("s_getreg_b32 s84, hwreg(HW_REG_XCC_ID)\ns_mov_b32 s85, s80")
        e(f"s_lshl_b32 s52, s2, 2\ns_add_u32 s52, s52, s3\ns_lshl_b32 s52, s52, 6\ns_add_u32 s52, s52, 0x8000000\nv_mov_b32 v3, s52\ns_waitcnt lgkmcnt(0)")
        order = list(range(86, 100)) + [84, 85]
        for k, s in enumerate(order): e(f"v_mov_b32 v{64+k}, s{s}")
        e("s_mov_b64 exec, 1")
        for k in range(4): e(f"buffer_store_dwordx4 v[{64+4*k}:{67+4*k}], v3, {sWS}, 0 offen offset:{16*k}")
    e("L_end:\ns_endpgm")
    body = b.finalize()
    out = HDR + f"; @launch grid=(256,1,1) block=(256,1,1) lds={LDS_BYTES}\n"
    out += '.amdgcn_target "amdgcn-amd-amdhsa--gfx950"\n.text\n' + f".globl {KN}_kernel\n.p2align 8\n.type {KN}_kernel,@function\n"
    out += "\n".join(l if l.endswith(":") else "    " + l for l in body) + "\n"
    out += f""".section .rodata,"a"
.p2align 6
.amdhsa_kernel {KN}_kernel
  .amdhsa_next_free_vgpr 512
  .amdhsa_next_free_sgpr 102
  .amdhsa_accum_offset 256
  .amdhsa_group_segment_fixed_size 0
  .amdhsa_kernarg_size 96
  .amdhsa_user_sgpr_count 2
  .amdhsa_user_sgpr_kernarg_segment_ptr 1
  .amdhsa_system_sgpr_workgroup_id_x 1
.end_amdhsa_kernel
"""
    return out

if __name__ == "__main__":
    name = sys.argv[1]
    kw = {}
    for a in sys.argv[2:]:
        k, v = a.split("=", 1)
        try: v = int(v)
        except ValueError: pass
        kw[k] = v
    open(name, "w").write(gen(**kw))
```

```python
import sys, struct, math
from asmb import Builder
KN = "recurrent_scan__mha_block_cached__glu_gated_glu__decode"
HDR = open("cdna_kernels/" + KN + ".s.ref").read().split("; Override launch")[0]

def f2u(x): return struct.unpack("<I", struct.pack("<f", x))[0]

DEF = dict(PRE=10, NF=16, LA=16, EAG=2, gran=4096, scope="wg", fK="nt", fV="nt", fWQ="nt", fG="", fWO="nt",
           GI=40, CNTG=10, STAMP=False, EXPISS=16, hmap="xcd", SLEEP=1)

WS_O, WS_ML, WS_Y, WS_G = 0, 0x10000, 0x20000, 0x40000
GROW = 176 * 64
L_XN, L_QP, L_GP, L_MX, L_LS, L_OP, L_WO = 0, 8192, 10240, 10496, 10512, 10752, 12800
LDS_BYTES = 12800 + 16384
OOB = 0x80000000

def gen(**kw):
    P = dict(DEF); P.update(kw)
    b = Builder(); e = b.e
    PRE, NF, LA = P["PRE"], P["NF"], P["LA"]
    nst = [0]
    def stamp():
        if P["STAMP"]:
            k = nst[0]; nst[0] += 1
            assert k < 7
            e(f"s_memrealtime s[{86+2*k}:{87+2*k}]"); b.smem = True
    sX, sK, sWQ, sV, sWO, sG, sU, sD, sWS, sO, sDB = [f"s[{i}:{i+3}]" for i in range(8, 52, 4)]
    e(f"{KN}_kernel:")
    stamp()
    e("""s_load_dwordx2 s[8:9], s[0:1], 0
    s_load_dwordx2 s[12:13], s[0:1], 8
    s_load_dwordx2 s[16:17], s[0:1], 24
    s_load_dwordx2 s[20:21], s[0:1], 16
    s_load_dwordx8 s[64:71], s[0:1], 32
    s_load_dwordx8 s[72:79], s[0:1], 64
    s_cmp_ge_u32 s2, 256
    s_cbranch_scc1 L_end
    v_lshrrev_b32 v3, 6, v0
    v_and_b32 v0, 63, v0
    s_and_b32 s7, s2, 7
    v_readfirstlane_b32 s3, v3
    s_lshr_b32 s6, s2, 3""")
    if P["hmap"] == "xcd":
        e("s_lshl_b32 s4, s7, 2\ns_lshr_b32 s5, s6, 3\ns_add_u32 s4, s4, s5\ns_and_b32 s5, s6, 7")
    else:
        e("s_and_b32 s4, s6, 0x18\ns_add_u32 s4, s4, s7\ns_and_b32 s5, s6, 7")
    gran = P["gran"]; G = gran // 1024
    if P["scope"] == "wg":
        e("s_lshl_b32 s52, s5, 18"); stride = gran * 4
    else:
        e(f"s_mul_i32 s52, s5, {gran*4}"); stride = gran * 32
    e(f"""s_lshl_b32 s53, s4, 21
    s_add_u32 s52, s52, s53
    s_mul_i32 s53, s3, {gran}
    s_add_u32 s52, s52, s53
    v_lshlrev_b32 v62, 4, v0
    v_add_u32 v1, s52, v62
    s_mov_b32 s10, 1024
    s_mov_b32 s11, 0x20000
    s_mov_b32 s14, 0x4000000
    s_mov_b32 s15, 0x20000
    s_mov_b32 s18, {0 if P.get('NOWQ') else 0x400000}
    s_mov_b32 s19, 0x20000
    s_mov_b32 s22, 0x4000000
    s_mov_b32 s23, 0x20000
    s_lshl_b32 s52, s3, 20
    s_lshl_b32 s53, s4, 8
    s_add_u32 s52, s52, s53
    v_lshrrev_b32 v61, 4, v0
    v_and_b32 v60, 15, v0
    v_lshlrev_b32 v2, 18, v61
    v_lshl_add_u32 v2, v60, 4, v2
    v_add_u32 v2, s52, v2
    s_mov_b32 s57, 0
    s_waitcnt lgkmcnt(0)""")
    b.smem = False
    def kv_off(i):
        g = i // G; j = i % G
        return g * stride + (j // 4) * 4096, (j % 4) * 1024
    cur = {"K": None, "V": None}
    def issue_kv(t, i):
        hi, lo = kv_off(i)
        sreg = "s56" if t == "K" else "s58"
        if cur[t] != hi:
            e(f"s_mov_b32 {sreg}, {hi}"); cur[t] = hi
        if t == "K":
            r = 128 + 4 * (i % 32)
            b.vm(f"K{i}", f"buffer_load_dwordx4 v[{r}:{r+3}], v1, {sK}, {sreg} offen offset:{lo} {P['fK']}")
        else:
            b.vm(f"V{i}", f"buffer_load_dwordx4 a[{4*i}:{4*i+3}], v1, {sV}, {sreg} offen offset:{lo} {P['fV']}")
    def issue_wq(i):
        if i: e("s_add_u32 s57, s57, 0x2000")
        b.vm(f"W{i}", f"buffer_load_dwordx4 a[{128+4*i}:{131+4*i}], v2, {sWQ}, s57 offen {P['fWQ']}")
    seq = [("K", i) for i in range(32)] + [("V", i) for i in range(NF)] + [("K", i) for i in range(32, 64)] + [("V", i) for i in range(NF, 64)]
    pos = {f"{t}{i}": n for n, (t, i) in enumerate(seq)}
    st = {"n": 0, "kfree": 32}
    def issue_next(cnt=1):
        for _ in range(cnt):
            if st["n"] >= len(seq): return
            t, i = seq[st["n"]]
            if t == "K" and i >= st["kfree"]: return
            if t == "V" and i >= 32 and not st.get("wqdone"): return
            issue_kv(t, i); st["n"] += 1
    def issue_upto(p):
        while st["n"] <= p and st["n"] < len(seq):
            n0 = st["n"]; issue_next()
            if st["n"] == n0: break

    b.vm("x", f"buffer_load_dwordx4 v[120:123], v62, {sX}, 0 offen")
    for i in range(PRE):
        issue_wq(i); issue_next()
    e(f"""s_mov_b32 s24, s64
    s_mov_b32 s25, s65
    s_mov_b32 s26, 0x400000
    s_mov_b32 s27, 0x20000
    s_mul_i32 s7, s7, 22
    s_add_u32 s7, s7, s6
    s_cmp_lt_u32 s6, 22
    s_cselect_b32 s6, s7, 0xff
    s_cmp_lt_u32 s6, 172
    s_cselect_b32 s30, {0 if P.get('NOGLU') else 1409024}, 0
    s_cselect_b32 s59, 0, {OOB}
    s_mov_b32 s28, s68
    s_mov_b32 s29, s69
    s_mov_b32 s31, 0x20000
    s_mov_b32 s32, s70
    s_mov_b32 s33, s71
    s_mov_b32 s34, s30
    s_mov_b32 s35, 0x20000
    s_mov_b32 s36, s72
    s_mov_b32 s37, s73
    s_mov_b32 s38, s30
    s_mov_b32 s39, 0x20000
    s_mov_b32 s40, s78
    s_mov_b32 s41, s79
    s_mov_b32 s42, 0x10000000
    s_mov_b32 s43, 0x20000
    s_mov_b32 s44, s74
    s_mov_b32 s45, s75
    s_mov_b32 s46, 1024
    s_mov_b32 s47, 0x20000
    s_mov_b32 s48, s76
    s_mov_b32 s49, s77
    s_mov_b32 s50, 256
    s_mov_b32 s51, 0x20000
    s_mov_b32 s60, {f2u(128**-0.5 * math.log2(math.e)):#x}
    s_mov_b32 s61, {f2u(-math.log2(math.e)):#x}""")
    GP = P.get("GPAT", 16)
    if GP == 16:
        e(f"""s_lshl_b32 s52, s3, 7
        v_add_u32 v3, s52, v0
        s_movk_i32 s53, 2752
        v_mul_u32_u24 v3, s53, v3
        s_lshl_b32 s52, s6, 4
        v_add_u32 v3, s52, v3
        s_mov_b32 s54, {64*2752}""")
        b.vm("g0", f"buffer_load_dwordx4 v[96:99], v3, {sG}, 0 offen {P['fG']}")
        b.vm("g1", f"buffer_load_dwordx4 v[100:103], v3, {sG}, s54 offen {P['fG']}")
        b.vm("u0", f"buffer_load_dwordx4 v[104:107], v3, {sU}, 0 offen {P['fG']}")
        b.vm("u1", f"buffer_load_dwordx4 v[108:111], v3, {sU}, s54 offen {P['fG']}")
    else:
        lpr = GP // 16; rpi = 64 // lpr; n = 128 // rpi
        sub = P.get("GSUB", 0)
        ntile = 1376 * 2 // GP
        e(f"""s_lshl_b32 s52, s3, {5 if sub else 7}
        v_lshrrev_b32 v3, {lpr.bit_length()-1}, v0
        v_add_u32 v3, s52, v3""")
        if sub:
            e("s_and_b32 s52, s6, 3\ns_lshl_b32 s52, s52, 7\nv_add_u32 v3, s52, v3\ns_lshr_b32 s82, s6, 2")
            n //= 4
        else:
            e(f"s_lshr_b32 s82, s6, {lpr.bit_length()-1}\ns_and_b32 s52, s6, {lpr-1}\ns_cmp_eq_u32 s52, 0\ns_cselect_b32 s30, s30, 0\ns_mov_b32 s34, s30")
        e(f"""s_movk_i32 s53, 2752
        v_mul_u32_u24 v3, s53, v3
        v_and_b32 v48, {lpr-1}, v0
        v_lshl_add_u32 v3, v48, 4, v3
        s_mul_i32 s52, s82, {GP}
        v_add_u32 v3, s52, v3""")
        for i in range(n):
            e(f"s_mov_b32 s54, {i*rpi*2752}")
            b.vm("g0", f"buffer_load_dwordx4 v[96:99], v3, {sG}, s54 offen {P['fG']}")
            b.vm("u1", f"buffer_load_dwordx4 v[104:107], v3, {sU}, s54 offen {P['fG']}")
    e(f"""s_lshl_b32 s62, s4, 3
    s_add_u32 s62, s62, s5
    s_lshl_b32 s52, s5, 2
    s_add_u32 s52, s52, s3
    s_lshl_b32 s52, s52, 11
    s_lshl_b32 s53, s4, 6
    s_add_u32 s63, s52, s53
    s_add_u32 s63, s63, {WS_Y}
    s_lshl_b32 s52, s62, 8
    s_lshl_b32 s53, s3, 6
    s_add_u32 s52, s52, s53
    s_add_u32 s52, s52, {WS_O - 64 + (1 << 32) if WS_O < 64 else WS_O - 64:#x}
    s_lshl_b32 s53, s62, 4
    s_add_u32 s53, s53, {WS_ML - 128}
    v_mov_b32 v3, {OOB:#x}
    v_mov_b32 v40, s53
    v_cmp_gt_u32 vcc, 9, v0
    v_cndmask_b32 v3, v3, v40, vcc
    v_mov_b32 v40, s52
    v_cmp_gt_u32 vcc, 8, v0
    v_cndmask_b32 v3, v3, v40, vcc
    v_mov_b32 v40, s63
    v_cmp_gt_u32 vcc, 4, v0
    v_cndmask_b32 v3, v3, v40, vcc
    v_add_u32 v3, v3, v62
    v_mov_b32 v16, -1
    v_mov_b32 v17, -1
    v_mov_b32 v18, -1
    v_mov_b32 v19, -1""")
    b.vm("clr", f"buffer_store_dwordx4 v[16:19], v3, {sWS}, 0 offen sc1")
    e("""v_and_b32 v40, 1, v60
    v_lshlrev_b32 v40, 4, v40
    v_mov_b32 v41, 0xffff
    v_lshlrev_b32 v41, v40, v41
    v_lshrrev_b32 v42, 1, v60""")
    for k in range(4):
        e(f"v_cmp_eq_u32 vcc, {k}, v42\nv_cndmask_b32 v{4+k}, 0, v41, vcc")
    def wave_sum(v):
        for s in (8, 4, 2, 1):
            e(f"v_add_f32_dpp {v}, {v}, {v} row_ror:{s} row_mask:0xf bank_mask:0xf")
        e(f"v_add_f32_dpp {v}, {v}, {v} row_bcast:15 row_mask:0xa bank_mask:0xf")
        e(f"v_add_f32_dpp {v}, {v}, {v} row_bcast:31 row_mask:0xc bank_mask:0xf")
    b.vneed("x")
    for k in range(4):
        e(f"v_lshlrev_b32 v{40+2*k}, 16, v{120+k}\nv_and_b32 v{41+2*k}, 0xffff0000, v{120+k}")
    e("""v_add_f32 v48, v40, v41
    v_add_f32 v49, v42, v43
    v_add_f32 v50, v44, v45
    v_add_f32 v51, v46, v47
    v_add_f32 v48, v48, v49
    v_add_f32 v50, v50, v51
    v_add_f32 v48, v48, v50""")
    wave_sum("v48")
    e("v_mul_f32 v48, 0x3b000000, v48\nv_readlane_b32 s52, v48, 63")
    for k in range(8): e(f"v_subrev_f32 v{52+k}, s52, v{40+k}")
    e("v_mul_f32 v48, v52, v52\nv_mul_f32 v49, v53, v53")
    for k in range(2, 8): e(f"v_fmac_f32 v{48+(k&1)}, v{52+k}, v{52+k}")
    e("v_add_f32 v48, v48, v49")
    wave_sum("v48")
    e("""v_mul_f32 v48, 0x3b000000, v48
    v_readlane_b32 s53, v48, 63
    v_cvt_pk_bf16_f32 v50, s52, s52
    v_cvt_pk_bf16_f32 v48, s53, s53
    v_lshlrev_b32 v50, 16, v50
    v_lshlrev_b32 v48, 16, v48
    v_add_f32 v48, 0x3727c5ac, v48
    v_cvt_pk_bf16_f32 v48, v48, v48
    v_lshlrev_b32 v48, 16, v48
    v_sqrt_f32 v48, v48
    v_cvt_pk_bf16_f32 v48, v48, v48
    v_lshlrev_b32 v48, 16, v48
    v_rcp_f32 v49, v48""")
    for k in range(8): e(f"v_sub_f32 v{40+k}, v{40+k}, v50")
    for k in range(4): e(f"v_cvt_pk_bf16_f32 v{120+k}, v{40+2*k}, v{41+2*k}")
    for k in range(4):
        e(f"v_lshlrev_b32 v{40+2*k}, 16, v{120+k}\nv_and_b32 v{41+2*k}, 0xffff0000, v{120+k}")
    for k in range(8): e(f"v_mul_f32 v{52+k}, v{40+k}, v49")
    for k in range(8): e(f"v_fma_f32 v{40+k}, -v{52+k}, v48, v{40+k}")
    for k in range(8): e(f"v_fmac_f32 v{52+k}, v{40+k}, v49")
    for k in range(8): e(f"v_cvt_pk_bf16_f32 v{40+k}, v{52+k}, v{52+k}")
    e(f"""s_lshl_b32 s52, s3, 11
    v_lshl_add_u32 v3, v62, 1, s52""")
    b.ds("xw0", f"ds_write_b128 v3, v[40:43] offset:{L_XN}")
    b.ds("xw1", f"ds_write_b128 v3, v[44:47] offset:{L_XN+16}")
    e(f"""s_mul_i32 s52, s3, {2048+512}
    v_lshl_add_u32 v3, v61, 7, s52
    v_lshl_add_u32 v48, v0, 2, s52""")
    b.dneed()
    for k in range(8):
        b.ds(f"xr{k}", f"ds_read_b128 v[{64+4*k}:{67+4*k}], v3 offset:{L_XN+16*k}")
    b.ds("xg0", f"ds_read_b32 v58, v48 offset:{L_XN}")
    b.ds("xg1", f"ds_read_b32 v59, v48 offset:{L_XN+256}")
    stamp()
    e(f"""s_lshl_b32 s52, s6, 13
    s_lshl_b32 s53, s3, 8
    s_add_u32 s52, s52, s53
    v_lshlrev_b32 v3, 10, v61
    v_lshl_add_u32 v3, v60, 4, v3
    v_add_u32 v3, s52, v3
    s_movk_i32 s53, 4096""")
    def issue_down():
        b.vm("d0", f"buffer_load_dwordx4 v[112:115], v3, {sD}, 0 offen {P['fWO']}")
        b.vm("d1", f"buffer_load_dwordx4 v[116:119], v3, {sD}, s53 offen {P['fWO']}")
    issue_down()
    e(f"""s_lshl_b32 s52, s4, 17
    s_lshl_b32 s53, s3, 15
    s_add_u32 s52, s52, s53
    s_lshl_b32 s53, s5, 7
    s_add_u32 s52, s52, s53
    v_lshrrev_b32 v3, 3, v0
    v_lshlrev_b32 v3, 10, v3
    v_and_b32 v48, 7, v0
    v_lshl_add_u32 v3, v48, 4, v3
    v_add_u32 v63, s52, v3
    s_lshl_b32 s55, s3, 12
    s_add_u32 s55, s55, {L_WO}""")
    def issue_wo(t):
        e(f"s_mov_b32 m0, s55\ns_mov_b32 s53, {8192*t}")
        b.vm(f"wo{t}", f"buffer_load_dwordx4 v63, {sWO}, s53 offen {P['fWO']} lds")
        if t < 3: e("s_add_u32 s55, s55, 1024")
    def ands(src, buf):
        for k in range(4): e(f"v_and_b32 v{16+4*buf+k}, {src}, v{4+k}")
    b.dneed("xr0")
    ands("v64", 0)
    for i in range(32):
        if i + 1 < 32:
            if (i + 1) % 4 == 0: b.dneed(f"xr{(i+1)//4}")
            ands(f"v{65+i}", (i + 1) & 1)
        b.vneed(f"W{i}")
        A = 16 + 4 * (i & 1)
        e(f"v_mfma_f32_16x16x32_bf16 v[12:15], v[{A}:{A+3}], a[{128+4*i}:{131+4*i}], {'0' if i == 0 else 'v[12:15]'}")
        if i + PRE < 32:
            issue_wq(i + PRE); issue_next()
        else:
            issue_next(2)
            if 28 <= i: issue_wo(i - 28)
    st["wqdone"] = True
    issue_upto(pos[f"V{NF-1}"] if NF else pos["K31"])
    stamp()
    b.dneed()
    e("""v_and_b32 v40, 0xffff, v58
    v_and_b32 v41, 0xffff0000, v58
    v_and_b32 v42, 0xffff, v59
    v_and_b32 v43, 0xffff0000, v59""")
    b.vneed("u1")
    for t in range(2):
        for m in range(2):
            for k in range(4):
                W = 96 + 8 * m + 4 * t + k
                for hf in range(2):
                    acc = 64 + 8 * m + 2 * k + hf
                    e(f"v_dot2_f32_bf16 v{acc}, v{W}, v{40+2*t+hf}, {'0' if t == 0 else 'v%d' % acc}")
    e(f"s_lshl_b32 s52, s3, 9\nv_add_u32 v3, s52, v62\ns_mov_b64 exec, 0xffffffff")
    b.ds("qw", f"ds_write_b128 v3, v[12:15] offset:{L_QP}")
    e("s_mov_b64 exec, -1")
    for j in range(8): e(f"v_permlane32_swap_b32 v{64+j}, v{72+j}")
    for j in range(8): e(f"v_add_f32 v{64+j}, v{64+j}, v{72+j}")
    for j in range(4): e(f"v_permlane16_swap_b32 v{64+j}, v{68+j}")
    for j in range(4): e(f"v_add_f32 v{64+j}, v{64+j}, v{68+j}")
    for s in (8, 4, 2, 1):
        for j in range(4): e(f"v_add_f32_dpp v{64+j}, v{64+j}, v{64+j} row_ror:{s} row_mask:0xf bank_mask:0xf")
    e(f"s_lshl_b32 s52, s3, 6\nv_lshl_add_u32 v3, v61, 2, s52\ns_mov_b32 exec_lo, 0x00010001\ns_mov_b32 exec_hi, 0x00010001")
    for j in range(4): b.ds("gw", f"ds_write_b32 v3, v{64+j} offset:{L_GP+16*j}")
    e("s_mov_b64 exec, -1")
    e("v_lshlrev_b32 v3, 4, v60\nv_lshlrev_b32 v48, 4, v61")
    b.dneed()
    e("s_barrier")
    for w in range(4):
        b.ds(f"qr{w}", f"ds_read_b128 v[{64+8*w}:{67+8*w}], v3 offset:{L_QP+512*w}")
        b.ds(f"qr{w}", f"ds_read_b128 v[{68+8*w}:{71+8*w}], v3 offset:{L_QP+512*w+256}")
    for w in range(4):
        b.ds(f"gr{w}", f"ds_read_b128 v[{96+4*w}:{99+4*w}], v48 offset:{L_GP+64*w}")
    b.dneed("qr1")
    for k in range(8): e(f"v_add_f32 v{64+k}, v{64+k}, v{72+k}")
    b.dneed("qr3")
    for k in range(8): e(f"v_add_f32 v{80+k}, v{80+k}, v{88+k}")
    for k in range(8): e(f"v_add_f32 v{64+k}, v{64+k}, v{80+k}")
    for k in range(4): e(f"v_cvt_pk_bf16_f32 v{8+k}, v{64+2*k}, v{65+2*k}")
    b.dneed("gr3")
    for k in range(4): e(f"v_add_f32 v{96+k}, v{96+k}, v{100+k}\nv_add_f32 v{104+k}, v{104+k}, v{108+k}")
    for k in range(4): e(f"v_add_f32 v{96+k}, v{96+k}, v{104+k}")
    e("""v_cvt_pk_bf16_f32 v96, v96, v97
    v_cvt_pk_bf16_f32 v98, v98, v99
    v_lshlrev_b32 v40, 16, v96
    v_and_b32 v41, 0xffff0000, v96
    v_lshlrev_b32 v42, 16, v98
    v_and_b32 v43, 0xffff0000, v98
    v_mul_f32 v40, s61, v40
    v_mul_f32 v41, s61, v41
    v_exp_f32 v40, v40
    v_exp_f32 v41, v41
    v_add_f32 v40, 1.0, v40
    v_add_f32 v41, 1.0, v41
    v_rcp_f32 v40, v40
    v_rcp_f32 v41, v41
    v_cvt_pk_bf16_f32 v40, v40, v41
    v_and_b32 v41, 0xffff0000, v40
    v_lshlrev_b32 v40, 16, v40
    v_mul_f32 v40, v40, v42
    v_mul_f32 v41, v41, v43
    v_cvt_pk_bf16_f32 v40, v40, v40
    v_cvt_pk_bf16_f32 v41, v41, v41""")
    ands("v40", 0); ands("v41", 1)
    b.vneed("d1")
    e("v_mfma_f32_16x16x32_bf16 v[12:15], v[16:19], v[112:115], 0")
    e("v_mfma_f32_16x16x32_bf16 v[12:15], v[20:23], v[116:119], v[12:15]")
    e(f"""s_mul_i32 s52, s3, {8*GROW}
    s_lshl_b32 s53, s6, 6
    s_add_u32 s52, s52, s53
    s_add_u32 s52, s52, {WS_G}
    s_add_u32 s52, s52, s59
    v_lshrrev_b32 v3, 1, v60
    v_mul_u32_u24 v3, {GROW}, v3
    v_and_b32 v48, 1, v60
    v_lshl_add_u32 v3, v48, 5, v3
    v_lshl_add_u32 v3, v61, 4, v3
    v_add_u32 v3, s52, v3
    s_mov_b64 exec, 0xffffffff""")
    b.vm("gst", f"buffer_store_dwordx4 v[12:15], v3, {sWS}, 0 offen sc1")
    e("s_mov_b64 exec, -1")
    e("v_mov_b32 v40, 0xff800000")
    stamp()
    for j in range(16):
        b.vneed(f"K{4*j+3}")
        for k in range(4):
            for u in range(4):
                i = 4 * j + u; r = 128 + 4 * (i % 32) + k
                e(f"v_dot2_f32_bf16 v{64+i}, v{r}, v{8+k}, {'0' if k == 0 else 'v%d' % (64+i)}")
        st["kfree"] = 32 + 4 * j + 4
        n0 = st["n"]
        issue_upto(pos[f"K{4*j+3}"] + LA)
        if j < 8 and st["n"] - n0 < P["EAG"]: issue_next(P["EAG"] - (st["n"] - n0))
        for s in (8, 4, 2, 1):
            for u in range(4):
                i = 64 + 4 * j + u
                e(f"v_add_f32_dpp v{i}, v{i}, v{i} row_ror:{s} row_mask:0xf bank_mask:0xf")
        e(f"v_max3_f32 v40, v{64+4*j}, v{65+4*j}, v40\nv_max3_f32 v40, v{66+4*j}, v{67+4*j}, v40")
        if j == P["CNTG"]:
            b.vneed("gst"); b.vneed("clr")
            e(f"""s_barrier
            s_cmp_eq_u32 s3, 0
            s_cselect_b32 s52, 0, {OOB}
            v_mov_b32 v3, s52
            v_mov_b32 v41, 1
            s_mov_b64 exec, 1""")
            b.vm("cntadd", f"buffer_atomic_add v41, v3, {sDB}, 0 offen")
            e("s_mov_b64 exec, -1")
    stamp()
    e("""v_mov_b32 v41, v40
    v_permlane16_swap_b32 v41, v40
    v_max_f32 v40, v40, v41
    v_mov_b32 v41, v40
    v_permlane32_swap_b32 v41, v40
    v_max_f32 v40, v40, v41
    s_lshl_b32 s52, s3, 2
    v_mov_b32 v3, s52
    v_mov_b32 v48, 0
    s_mov_b64 exec, 1""")
    b.ds("mw", f"ds_write_b32 v3, v40 offset:{L_MX}")
    e("s_mov_b64 exec, -1")
    issue_next(2)
    b.vneed("wo3")
    b.dneed()
    e("s_barrier")
    b.ds("mr", f"ds_read_b128 v[44:47], v48 offset:{L_MX}")
    e(f"""v_lshlrev_b32 v49, 3, v61
    v_bfe_u32 v50, v0, 2, 2
    v_add_u32 v49, v49, v50
    v_lshlrev_b32 v49, 7, v49
    v_and_b32 v50, 3, v0
    v_lshl_add_u32 v49, v50, 3, v49
    s_lshl_b32 s52, s3, 5
    v_add_u32 v49, s52, v49""")
    for kk in range(4):
        for hh in range(2):
            r = 24 + 4 * kk + 2 * hh
            b.ds("wtr", f"ds_read_b64_tr_b16 v[{r}:{r+1}], v49 offset:{L_WO+(32*kk+4*hh)*128}")
    b.dneed("mr")
    e("""v_max3_f32 v40, v44, v45, v46
    v_max_f32 v40, v40, v47
    v_mul_f32 v56, s60, v40
    v_sub_f32 v41, 0, v56
    v_mov_b32 v42, 0
    v_mov_b32 v43, 0""")
    b.vm("cnt", f"buffer_load_dword v63, v48, {sDB}, 0 offen sc1")
    for j in range(16):
        for u in range(4): e(f"v_fma_f32 v{64+4*j+u}, v{64+4*j+u}, s60, v41")
        for u in range(4): e(f"v_exp_f32 v{64+4*j+u}, v{64+4*j+u}")
        for u in range(4): e(f"v_add_f32 v{42+(u&1)}, v{42+(u&1)}, v{64+4*j+u}")
        for u in range(4): e(f"v_cvt_pk_bf16_f32 v{64+4*j+u}, v{64+4*j+u}, v{64+4*j+u}")
        if P["EXPISS"] and (4 * j + 4) % P["EXPISS"] == 0: issue_next(1)
    e("""v_add_f32 v42, v42, v43
    v_mov_b32 v43, v42
    v_permlane16_swap_b32 v43, v42
    v_add_f32 v42, v42, v43
    v_mov_b32 v43, v42
    v_permlane32_swap_b32 v43, v42
    v_add_f32 v42, v42, v43
    s_mov_b64 exec, 1""")
    b.ds("lw", f"ds_write_b32 v3, v42 offset:{L_LS}")
    e("s_mov_b64 exec, -1")
    b.dneed()
    e("s_barrier")
    b.ds("lr", f"ds_read_b128 v[44:47], v48 offset:{L_LS}")
    e(f"""s_lshl_b32 s52, s62, 4
    s_add_u32 s52, s52, {WS_ML}
    s_cmp_eq_u32 s3, 0
    s_cselect_b32 s52, s52, {OOB}
    v_mov_b32 v3, s52""")
    b.dneed()
    e("""v_add_f32 v44, v44, v45
    v_add_f32 v46, v46, v47
    v_add_f32 v45, v44, v46
    v_min_u32 v44, -2, v56
    v_min_u32 v45, -2, v45
    s_mov_b64 exec, 1""")
    b.vm("mlst", f"buffer_store_dwordx2 v[44:45], v3, {sWS}, 0 offen sc1")
    e("s_mov_b64 exec, -1")
    e(f"""s_lshl_b32 s52, s5, 2
    s_add_u32 s52, s52, s3
    s_cmp_eq_u32 s52, s4
    s_cselect_b32 s80, 0, {OOB}
    s_mov_b32 s81, 0x100000""")
    def gathers():
        b.vneed("cnt")
        e(f"""v_readfirstlane_b32 s52, v63
        s_cmp_ge_u32 s52, {0 if P.get('NOCNT') else 256}
        s_cbranch_scc1 L_cnt_ok
        L_cnt_spin:
        s_sleep 8
        buffer_load_dword v63, v48, {sDB}, 0 offen sc1
        s_sub_u32 s81, s81, 1
        s_cbranch_scc1 L_end
        s_waitcnt vmcnt(0)
        v_readfirstlane_b32 s52, v63
        s_cmp_ge_u32 s52, 256
        s_cbranch_scc0 L_cnt_spin
        L_cnt_ok:
        s_lshl_b32 s52, s4, 7
        s_add_u32 s52, s52, {WS_ML}
        v_and_b32 v3, 7, v0
        v_lshl_add_u32 v57, v3, 4, s52""")
        b.vm("ml", f"buffer_load_dwordx2 v[172:173], v57, {sWS}, 0 offen sc1")
        e(f"""s_mul_i32 s52, s4, {GROW}
        s_add_u32 s52, s52, {WS_G}
        s_add_u32 s52, s52, s80
        v_add_u32 v3, s52, v62
        v_mov_b32 v49, {OOB:#x}
        v_cmp_gt_u32 vcc, 48, v0
        v_cndmask_b32 v49, v49, v3, vcc
        s_movk_i32 s53, 4096
        s_movk_i32 s54, 8192""")
        for t in range(11):
            so = ["0", "s53", "s54"][t // 4]
            b.vm("gg", f"buffer_load_dwordx4 v[{128+4*t}:{131+4*t}], {'v49' if t == 10 else 'v3'}, {sWS}, {so} offen offset:{(t%4)*1024} sc1")
        e(f"""s_lshl_b32 s52, s4, 5
        s_add_u32 s52, s52, s80
        v_and_b32 v3, 3, v0
        v_lshlrev_b32 v3, 3, v3
        v_lshl_add_u32 v3, v61, 1, v3
        v_add_u32 v55, s52, v3""")
        b.vm("xf", f"buffer_load_ushort v174, v55, {sX}, 0 offen")
    def reduce4(r):
        e(f"""v_permlane32_swap_b32 v{r}, v{r+2}
        v_permlane32_swap_b32 v{r+1}, v{r+3}
        v_add_f32 v{r}, v{r}, v{r+2}
        v_add_f32 v{r+1}, v{r+1}, v{r+3}
        v_permlane16_swap_b32 v{r}, v{r+1}
        v_add_f32 v{r}, v{r}, v{r+1}
        v_add_f32_dpp v{r}, v{r}, v{r} row_ror:4 row_mask:0xf bank_mask:0xf
        v_add_f32_dpp v{r}, v{r}, v{r} row_ror:8 row_mask:0xf bank_mask:0xf""")
    def use_gathers():
        b.vneed("xf")
        e(f"""L_ml_chk:
        v_max_u32 v3, v172, v173
        v_cmp_eq_u32 vcc, -1, v3
        s_cbranch_vccz L_ml_ok
        s_sleep 4
        buffer_load_dwordx2 v[172:173], v57, {sWS}, 0 offen sc1
        s_sub_u32 s81, s81, 1
        s_cbranch_scc1 L_end
        s_waitcnt vmcnt(0)
        s_branch L_ml_chk
        L_ml_ok:
        v_max_f32_dpp v44, v172, v172 row_half_mirror row_mask:0xf bank_mask:0xf
        v_max_f32_dpp v44, v44, v44 quad_perm:[2,3,0,1] row_mask:0xf bank_mask:0xf
        v_max_f32_dpp v44, v44, v44 quad_perm:[1,0,3,2] row_mask:0xf bank_mask:0xf
        v_sub_f32 v45, v172, v44
        v_sub_f32 v46, v56, v44
        v_exp_f32 v45, v45
        v_exp_f32 v46, v46
        v_mul_f32 v45, v45, v173
        v_add_f32_dpp v45, v45, v45 row_half_mirror row_mask:0xf bank_mask:0xf
        v_add_f32_dpp v45, v45, v45 quad_perm:[2,3,0,1] row_mask:0xf bank_mask:0xf
        v_add_f32_dpp v45, v45, v45 quad_perm:[1,0,3,2] row_mask:0xf bank_mask:0xf
        v_rcp_f32 v45, v45
        v_mul_f32 v54, v45, v46
        s_cmp_eq_u32 s80, 0
        s_cbranch_scc0 L_nog""")
        for t in range(1, 11):
            for k in range(4): e(f"v_add_f32 v{128+k}, v{128+k}, v{128+4*t+k}")
        reduce4(128)
        e("""v_cvt_pk_bf16_f32 v128, v128, v128
        v_lshlrev_b32 v128, 16, v128
        v_mul_f32 v129, s61, v128
        v_exp_f32 v129, v129
        v_add_f32 v129, 1.0, v129
        v_rcp_f32 v129, v129
        v_mul_f32 v128, v128, v129
        v_cvt_pk_bf16_f32 v128, v128, v128
        v_lshlrev_b32 v53, 16, v128
        v_lshlrev_b32 v52, 16, v174
        L_nog:""")
        e(f"""s_lshl_b32 s52, s3, 9
        v_lshlrev_b32 v51, 5, v60
        v_lshl_add_u32 v51, v61, 4, v51
        v_add_u32 v51, s52, v51
        v_lshlrev_b32 v50, 3, v0
        s_lshl_b32 s52, s62, 8
        s_cmp_eq_u32 s3, 0
        s_cselect_b32 s52, s52, {OOB}
        v_lshl_add_u32 v49, v0, 2, s52
        s_lshl_b32 s52, s4, 11
        v_lshlrev_b32 v48, 8, v60
        v_lshl_add_u32 v48, v61, 4, v48
        v_add_u32 v48, s52, v48
        v_mov_b32 v3, {OOB:#x}
        v_cmp_gt_u32 vcc, 8, v60
        v_cndmask_b32 v48, v3, v48, vcc
        v_lshl_add_u32 v47, v61, 4, s63
        s_add_u32 s52, s52, {WS_Y}
        v_add_u32 v46, s52, v62""")
    ands("v64", 0)
    used = False
    for i in range(64):
        if i + 1 < 64: ands(f"v{65+i}", (i + 1) & 1)
        b.vneed(f"V{i}")
        A = 16 + 4 * (i & 1)
        e(f"v_mfma_f32_16x16x32_bf16 v[12:15], v[{A}:{A+3}], a[{4*i}:{4*i+3}], {'0' if i == 0 else 'v[12:15]'}")
        if i == P["GI"]:
            gathers(); gpos = st["n"]
        issue_upto(pos[f"V{i}"] + LA)
        if i > P["GI"] and not used and (pos[f"V{i}"] >= gpos - 1 or i == 62):
            use_gathers(); used = True
    assert used and st["n"] == len(seq)
    stamp()
    e("s_mov_b64 exec, 0xffffffff")
    b.ds("ow", f"ds_write_b128 v51, v[12:15] offset:{L_OP}")
    e("s_mov_b64 exec, -1")
    b.dneed()
    e("s_barrier")
    for w in range(4): b.ds(f"or{w}", f"ds_read_b64 v[{176+2*w}:{177+2*w}], v50 offset:{L_OP+512*w}")
    b.dneed("or1")
    e("v_add_f32 v176, v176, v178\nv_add_f32 v177, v177, v179")
    b.dneed("or3")
    e("""v_add_f32 v180, v180, v182
    v_add_f32 v181, v181, v183
    v_add_f32 v176, v176, v180
    v_add_f32 v177, v177, v181
    v_mul_f32 v176, v176, v54
    v_mul_f32 v177, v177, v54
    v_cvt_pk_bf16_f32 v176, v176, v177
    v_min_u32 v176, -2, v176
    v_mov_b32_dpp v177, v176 quad_perm:[1,1,1,1] row_mask:0xf bank_mask:0xf
    v_mov_b32_dpp v178, v176 quad_perm:[2,2,2,2] row_mask:0xf bank_mask:0xf
    v_mov_b32_dpp v179, v176 quad_perm:[3,3,3,3] row_mask:0xf bank_mask:0xf
    s_mov_b32 exec_lo, 0x11111111
    s_mov_b32 exec_hi, 0x11111111""")
    e(f"buffer_store_dwordx4 v[176:179], v49, {sWS}, 0 offen offset:{WS_O} sc1")
    e("s_mov_b64 exec, -1")
    e("L_poll1:")
    for kk in range(4):
        e(f"buffer_load_dwordx4 v[{180+4*kk}:{183+4*kk}], v48, {sWS}, 0 offen offset:{WS_O+64*kk} sc1")
    e("""s_sub_u32 s81, s81, 1
    s_cbranch_scc1 L_end
    s_waitcnt vmcnt(3)
    v_max3_u32 v3, v180, v181, v182
    s_waitcnt vmcnt(2)
    v_max3_u32 v3, v3, v183, v184
    v_max3_u32 v40, v185, v186, v187
    s_waitcnt vmcnt(1)
    v_max3_u32 v3, v3, v188, v189
    v_max3_u32 v40, v40, v190, v191
    s_waitcnt vmcnt(0)
    v_max3_u32 v3, v3, v192, v193
    v_max3_u32 v40, v40, v194, v195
    v_max_u32 v3, v3, v40
    v_cmp_eq_u32 vcc, -1, v3
    s_and_b64 exec, exec, vcc
    s_cbranch_scc0 L_got1""")
    if P["SLEEP"]: e(f"s_sleep {P['SLEEP']}")
    e("""s_branch L_poll1
    L_got1:
    s_mov_b64 exec, -1""")
    for kk in range(4):
        e(f"v_mfma_f32_16x16x32_bf16 v[12:15], v[{24+4*kk}:{27+4*kk}], v[{180+4*kk}:{183+4*kk}], {'0' if kk == 0 else 'v[12:15]'}")
    for s in (4, 2, 1):
        for r in range(4): e(f"v_add_f32_dpp v{12+r}, v{12+r}, v{12+r} row_shl:{s} row_mask:0xf bank_mask:0xf bound_ctrl:0")
    for r in range(4): e(f"v_min_u32 v{12+r}, -2, v{12+r}")
    e(f"""s_mov_b32 exec_lo, 0x00010001
    s_mov_b32 exec_hi, 0x00010001
    buffer_store_dwordx4 v[12:15], v47, {sWS}, 0 offen sc1
    s_mov_b64 exec, -1
    s_cmp_eq_u32 s80, 0
    s_cbranch_scc0 L_fin
    L_poll2:
    buffer_load_dwordx4 v[180:183], v46, {sWS}, 0 offen sc1
    buffer_load_dwordx4 v[184:187], v46, {sWS}, 0 offen offset:1024 sc1
    s_sub_u32 s81, s81, 1
    s_cbranch_scc1 L_end
    s_waitcnt vmcnt(1)
    v_max3_u32 v3, v180, v181, v182
    s_waitcnt vmcnt(0)
    v_max3_u32 v40, v184, v185, v186
    v_max3_u32 v3, v3, v183, v187
    v_max_u32 v3, v3, v40
    v_cmp_eq_u32 vcc, -1, v3
    s_and_b64 exec, exec, vcc
    s_cbranch_scc0 L_got2""")
    if P["SLEEP"]: e(f"s_sleep {P['SLEEP']}")
    e("""s_branch L_poll2
    L_got2:
    s_mov_b64 exec, -1""")
    for k in range(4): e(f"v_add_f32 v{180+k}, v{180+k}, v{184+k}")
    reduce4(180)
    e(f"""v_cvt_pk_bf16_f32 v180, v180, v180
    v_lshlrev_b32 v180, 16, v180
    v_mul_f32 v180, v180, v53
    v_cvt_pk_bf16_f32 v180, v180, v180
    v_lshlrev_b32 v180, 16, v180
    v_add_f32 v180, v180, v52
    v_cvt_pk_bf16_f32 v180, v180, v180
    s_mov_b32 exec_lo, 0x000f000f
    s_mov_b32 exec_hi, 0x000f000f
    buffer_store_short v180, v55, {sO}, 0 offen
    L_fin:""")
    if P["STAMP"]:
        e("s_mov_b64 exec, -1\ns_waitcnt vmcnt(0)")
        stamp()
        if P["STAMP"] == 2:
            e("s_waitcnt lgkmcnt(0)\nv_mov_b32 v64, 0")
            for k in range(7):
                e(f"s_not_b32 s52, s{86+2*k}\nv_writelane_b32 v64, s{86+2*k}, {2*k}\nv_writelane_b32 v64, s52, {2*k+1}")
            e("v_lshlrev_b32 v3, 2, v0\ns_mov_b64 exec, 0x3fff")
            e(f"buffer_atomic_umax v64, v3, {sDB}, 0 offen offset:8")
        else:
            e("s_getreg_b32 s84, hwreg(HW_REG_XCC_ID)\ns_mov_b32 s85, s80")
            e(f"s_lshl_b32 s52, s2, 2\ns_add_u32 s52, s52, s3\ns_lshl_b32 s52, s52, 6\ns_add_u32 s52, s52, 0x8000000\nv_mov_b32 v3, s52\ns_waitcnt lgkmcnt(0)")
            order = list(range(86, 100)) + [84, 85]
            for k, s in enumerate(order): e(f"v_mov_b32 v{64+k}, s{s}")
            e("s_mov_b64 exec, 1")
            for k in range(4): e(f"buffer_store_dwordx4 v[{64+4*k}:{67+4*k}], v3, {sWS}, 0 offen offset:{16*k}")
    e("L_end:\ns_endpgm")
    body = b.finalize()
    out = HDR + f"; @launch grid=(256,1,1) block=(256,1,1) lds={LDS_BYTES}\n"
    out += '.amdgcn_target "amdgcn-amd-amdhsa--gfx950"\n.text\n' + f".globl {KN}_kernel\n.p2align 8\n.type {KN}_kernel,@function\n"
    out += "\n".join(l if l.endswith(":") else "    " + l for l in body) + "\n"
    out += f""".section .rodata,"a"
.p2align 6
.amdhsa_kernel {KN}_kernel
  .amdhsa_next_free_vgpr 512
  .amdhsa_next_free_sgpr 102
  .amdhsa_accum_offset 256
  .amdhsa_group_segment_fixed_size 0
  .amdhsa_kernarg_size 96
  .amdhsa_user_sgpr_count 2
  .amdhsa_user_sgpr_kernarg_segment_ptr 1
  .amdhsa_system_sgpr_workgroup_id_x 1
.end_amdhsa_kernel
"""
    return out

if __name__ == "__main__":
    name = sys.argv[1]
    kw = {}
    for a in sys.argv[2:]:
        k, v = a.split("=", 1)
        try: v = int(v)
        except ValueError: pass
        kw[k] = v
    open(name, "w").write(gen(**kw))
```

```python
import sys, struct, math
from asmb import Builder
KN = "recurrent_scan__mha_block_cached__glu_gated_glu__decode"
HDR = open("cdna_kernels/" + KN + ".s.ref").read().split("; Override launch")[0]
def f2u(x): return struct.unpack("<I", struct.pack("<f", x))[0]

DEF = dict(PRE=10, LNI=1, GUE=2, NF=0, KR=40, LA=8, LAK=12, QI=14, gran=4096, scope="wg", fK="nt", fV="nt", fWQ="nt", fG="nt", fWO="nt", fD="nt",
           GPJ=8, WOJ=11, STAMP=0, hmap="xcd", SLEEP=1, MIDX=3, LAV=None)

WS_O, WS_ML, WS_EP, WS_Q, WS_GP, WS_Y, WS_G = 0, 0x10000, 0x11000, 0x12000, 0x32000, 0x40000, 0x50000
GROW = 176 * 64
L_PP, L_GW, L_QF, L_MX, L_LS, L_OP, L_WO = 0, 2048, 3072, 3328, 3344, 3584, 5632
LDS_BYTES = L_WO + 16384
OOB = 0x80000000
DPP = "row_mask:0xf bank_mask:0xf"

def gen(**kw):
    P = dict(DEF); P.update(kw)
    b = Builder(); e = b.e
    PRE, NF, LA, KR = P["PRE"], P["NF"], P["LA"], P["KR"]
    LAV = P["LAV"] or LA
    RING = 256 - 4 * KR
    nst = [0]
    def stamp():
        if P["STAMP"]:
            k = nst[0]; nst[0] += 1
            assert k < 7
            e(f"s_memrealtime s[{86+2*k}:{87+2*k}]"); b.smem = True
    sX, sK, sWQ, sV, sWO, sG, sU, sD, sWS, sO, sDB = [f"s[{i}:{i+3}]" for i in range(8, 52, 4)]
    e(f"{KN}_kernel:")
    if P.get("SPIN"): e("s_memrealtime s[100:101]")
    stamp()
    e("""s_load_dwordx2 s[8:9], s[0:1], 0
    s_load_dwordx2 s[12:13], s[0:1], 8
    s_load_dwordx2 s[16:17], s[0:1], 24
    s_load_dwordx2 s[28:29], s[0:1], 48
    s_load_dwordx2 s[32:33], s[0:1], 56
    s_load_dwordx8 s[72:79], s[0:1], 64
    s_load_dwordx2 s[20:21], s[0:1], 16
    s_cmp_ge_u32 s2, 256
    s_cbranch_scc1 L_end
    v_lshrrev_b32 v3, 6, v0
    v_and_b32 v0, 63, v0
    s_and_b32 s7, s2, 7
    v_readfirstlane_b32 s3, v3
    s_lshr_b32 s6, s2, 3""")
    if P["hmap"] == "xcd":
        e("s_lshl_b32 s4, s7, 2\ns_lshr_b32 s5, s6, 3\ns_add_u32 s4, s4, s5\ns_and_b32 s5, s6, 7")
    else:
        e("s_and_b32 s4, s6, 0x18\ns_add_u32 s4, s4, s7\ns_and_b32 s5, s6, 7")
    gran = P["gran"]; G = gran // 1024
    if P["scope"] == "wg":
        e("s_lshl_b32 s52, s5, 18"); stride = gran * 4
    else:
        e(f"s_mul_i32 s52, s5, {gran*4}"); stride = gran * 32
    e(f"""s_lshl_b32 s53, s4, 21
    s_add_u32 s52, s52, s53
    s_mul_i32 s53, s3, {gran}
    s_add_u32 s52, s52, s53
    v_lshlrev_b32 v62, 4, v0
    v_add_u32 v1, s52, v62
    v_lshrrev_b32 v61, 4, v0
    v_and_b32 v60, 15, v0
    s_mul_i32 s7, s7, 22
    s_add_u32 s7, s7, s6
    s_cmp_lt_u32 s6, 22
    s_cselect_b32 s6, s7, 0xff
    s_cmp_lt_u32 s6, 172
    s_cselect_b32 s30, {0 if P.get('NOGLU') else 1409024}, 0
    s_cselect_b32 s59, 0, {OOB}
    s_mov_b32 s34, s30
    s_mov_b32 s10, 1024
    s_mov_b32 s11, 0x20000
    s_mov_b32 s14, 0x4000000
    s_mov_b32 s15, 0x20000
    s_mov_b32 s18, 0x400000
    s_mov_b32 s19, 0x20000
    s_mov_b32 s31, 0x20000
    s_mov_b32 s35, 0x20000
    s_lshl_b32 s52, s5, 2
    s_add_u32 s54, s52, s3
    s_lshl_b32 s52, s54, 5
    v_lshl_add_u32 v48, v61, 3, s52
    s_lshl_b32 s52, s54, 17
    s_lshl_b32 s53, s4, 8
    s_add_u32 s52, s52, s53
    v_lshlrev_b32 v2, 15, v61
    v_lshl_add_u32 v2, v60, 4, v2
    v_add_u32 v2, s52, v2
    s_and_b32 s52, s6, 3
    s_lshl_b32 s52, s52, 2
    s_add_u32 s52, s52, s3
    s_lshl_b32 s52, s52, 5
    v_lshrrev_b32 v3, 2, v0
    v_add_u32 v3, s52, v3
    v_lshlrev_b32 v49, 1, v3
    v_mul_u32_u24 v3, 2752, v3
    v_and_b32 v50, 3, v0
    v_lshl_add_u32 v3, v50, 4, v3
    s_lshr_b32 s52, s6, 2
    s_lshl_b32 s52, s52, 6
    v_add_u32 v3, s52, v3
    s_movk_i32 s55, 0x2000
    s_movk_i32 s56, 0x4000
    s_movk_i32 s57, 0x6000
    s_mov_b32 s58, {16*2752}
    s_waitcnt lgkmcnt(0)""")
    b.smem = False
    b.vm("x", f"buffer_load_dwordx4 v[40:43], v62, {sX}, 0 offen")
    b.vm("xq", f"buffer_load_dwordx2 v[44:45], v48, {sX}, 0 offen")
    b.vm("xg0", f"buffer_load_ushort v46, v49, {sX}, 0 offen")
    b.vm("xg1", f"buffer_load_ushort v47, v49, {sX}, 0 offen offset:32")
    for i in range(4):
        b.vm(f"W{i}", f"buffer_load_dwordx4 a[{240+4*i}:{243+4*i}], v2, {sWQ}, {['0','s55','s56','s57'][i]} offen {P['fWQ']}")
    e("v_mov_b32 v63, v3\ns_mov_b32 s84, s58")
    gul = [("g0", f"buffer_load_dwordx4 v[64:67], v63, {sG}, 0 offen {P['fG']}"),
           ("u0", f"buffer_load_dwordx4 v[72:75], v63, {sU}, 0 offen {P['fG']}"),
           ("g1", f"buffer_load_dwordx4 v[68:71], v63, {sG}, s84 offen {P['fG']}"),
           ("u1", f"buffer_load_dwordx4 v[76:79], v63, {sU}, s84 offen {P['fG']}")]
    def kv_off(i):
        g = i // G; j = i % G
        return g * stride + (j // 4) * 4096, (j % 4) * 1024
    cur = {"K": None, "V": None}
    def kreg(i): return RING + 4 * (i % KR)
    def issue_kv(t, i):
        hi, lo = kv_off(i)
        sreg = "s56" if t == "K" else "s58"
        if cur[t] != hi:
            e(f"s_mov_b32 {sreg}, {hi}"); cur[t] = hi
        if t == "K":
            r = kreg(i)
            b.vm(f"K{i}", f"buffer_load_dwordx4 v[{r}:{r+3}], v1, {sK}, {sreg} offen offset:{lo} {P['fK']}")
        else:
            b.vm(f"V{i}", f"buffer_load_dwordx4 a[{4*i}:{4*i+3}], v1, {sV}, {sreg} offen offset:{lo} {P['fV']}")
    seq = [("K", i) for i in range(KR)] + [("V", i) for i in range(NF)] + [("K", i) for i in range(KR, 64)] + [("V", i) for i in range(NF, 64)]
    tag = [f"{t}{i}" for t, i in seq]
    pos = {t: n for n, t in enumerate(tag)}
    st = {"n": 0, "kfree": KR, "vfree": 58}
    def issue_next(cnt=1):
        for _ in range(cnt):
            if st["n"] >= len(seq): return
            t, i = seq[st["n"]]
            if t == "K" and i >= st["kfree"]: return
            if t == "V" and i >= st["vfree"]: return
            issue_kv(t, i); st["n"] += 1
    def issue_upto(p):
        while st["n"] <= p and st["n"] < len(seq):
            n0 = st["n"]; issue_next()
            if st["n"] == n0: break
    issue_upto(PRE - 1)
    e(f"""s_load_dword s82, s[78:79], {WS_EP}
    s_load_dwordx2 s[24:25], s[0:1], 32
    s_mov_b32 s22, 0x4000000
    s_mov_b32 s23, 0x20000
    s_mov_b32 s26, 0x400000
    s_mov_b32 s27, 0x20000
    s_mov_b32 s36, s72
    s_mov_b32 s37, s73
    s_mov_b32 s38, s30
    s_mov_b32 s39, 0x20000
    s_mov_b32 s40, s78
    s_mov_b32 s41, s79
    s_mov_b32 s42, 0x10000000
    s_mov_b32 s43, 0x20000
    s_mov_b32 s44, s74
    s_mov_b32 s45, s75
    s_mov_b32 s46, 1024
    s_mov_b32 s47, 0x20000
    s_mov_b32 s60, {f2u(128**-0.5 * math.log2(math.e)):#x}
    s_mov_b32 s61, {f2u(-math.log2(math.e)):#x}
    s_mov_b32 s64, 0xffffff00
    s_mov_b32 s81, 0x100000
    s_lshl_b32 s62, s4, 3
    s_add_u32 s62, s62, s5
    s_lshl_b32 s52, s54, 11
    s_lshl_b32 s53, s4, 6
    s_add_u32 s63, s52, s53
    s_add_u32 s63, s63, {WS_Y}
    s_lshl_b32 s52, s62, 8
    s_lshl_b32 s53, s3, 6
    s_add_u32 s52, s52, s53
    s_add_u32 s52, s52, {(WS_O - 64) & 0xffffffff:#x}
    v_mov_b32 v3, {OOB:#x}
    v_mov_b32 v50, s52
    v_cmp_gt_u32 vcc, 8, v0
    v_mov_b32 v51, s63
    v_mov_b32 v16, -1
    v_cndmask_b32 v3, v3, v50, vcc
    v_cmp_gt_u32 vcc, 4, v0
    v_mov_b32 v17, -1
    v_mov_b32 v18, -1
    v_cndmask_b32 v3, v3, v51, vcc
    v_mov_b32 v19, -1
    v_add_u32 v3, v3, v62""")
    if P["STAMP"] == 2:
        e("s_mov_b32 s48, s76\ns_mov_b32 s49, s77\ns_mov_b32 s50, 256\ns_mov_b32 s51, 0x20000")
    b.smem = True
    b.vm("clr", f"buffer_store_dwordx4 v[16:19], v3, {sWS}, 0 offen sc1")
    e(f"""s_cmp_eq_u32 s54, s4
    s_cselect_b32 s80, 0, {OOB}
    s_cmp_eq_u32 s3, 0
    s_cselect_b32 s65, 0, {OOB}
    v_and_b32 v50, 1, v60
    v_lshlrev_b32 v50, 4, v50
    v_mov_b32 v51, 0xffff
    v_lshlrev_b32 v51, v50, v51
    v_lshrrev_b32 v52, 1, v60""")
    for k in range(4):
        e(f"v_cmp_eq_u32 s[{66+2*k}:{67+2*k}], {k}, v52")
    for k in range(4):
        e(f"v_cndmask_b32 v{4+k}, 0, v51, s[{66+2*k}:{67+2*k}]")
    def wave_sum(v):
        for s in (8, 4, 2, 1): e(f"v_add_f32_dpp {v}, {v}, {v} row_ror:{s} {DPP}")
        e(f"v_add_f32_dpp {v}, {v}, {v} row_bcast:15 row_mask:0xa bank_mask:0xf")
        e(f"v_add_f32_dpp {v}, {v}, {v} row_bcast:31 row_mask:0xc bank_mask:0xf")
    b.vneed("x")
    for k in range(4):
        e(f"v_lshlrev_b32 v{80+2*k}, 16, v{40+k}\nv_and_b32 v{81+2*k}, 0xffff0000, v{40+k}")
    e("""v_add_f32 v48, v80, v81
    v_add_f32 v49, v82, v83
    v_add_f32 v50, v84, v85
    v_add_f32 v51, v86, v87
    v_add_f32 v48, v48, v49
    v_add_f32 v50, v50, v51
    v_add_f32 v48, v48, v50""")
    wave_sum("v48")
    issue_next(P["LNI"])
    e("v_mul_f32 v48, 0x3b000000, v48\nv_readlane_b32 s52, v48, 63")
    for k in range(8): e(f"v_subrev_f32 v{80+k}, s52, v{80+k}")
    e("v_mul_f32 v48, v80, v80\nv_mul_f32 v49, v81, v81")
    for k in range(2, 8): e(f"v_fmac_f32 v{48+(k&1)}, v{80+k}, v{80+k}")
    e("v_add_f32 v48, v48, v49")
    wave_sum("v48")
    issue_next(P["LNI"])
    b.vneed("xg1")
    e("""v_mul_f32 v48, 0x3b000000, v48
    v_cvt_pk_bf16_f32 v50, s52, s52
    v_readlane_b32 s53, v48, 63
    v_lshlrev_b32 v50, 16, v50
    v_lshlrev_b32 v80, 16, v44
    v_cvt_pk_bf16_f32 v48, s53, s53
    v_and_b32 v81, 0xffff0000, v44
    v_lshlrev_b32 v48, 16, v48
    v_lshlrev_b32 v82, 16, v45
    v_add_f32 v48, 0x3727c5ac, v48
    v_and_b32 v83, 0xffff0000, v45
    v_cvt_pk_bf16_f32 v48, v48, v48
    v_lshlrev_b32 v84, 16, v46
    v_lshlrev_b32 v48, 16, v48
    v_lshlrev_b32 v85, 16, v47
    v_sqrt_f32 v48, v48""")
    for k in range(6): e(f"v_sub_f32 v{80+k}, v{80+k}, v50")
    e("v_cvt_pk_bf16_f32 v48, v48, v48")
    for k in range(3): e(f"v_cvt_pk_bf16_f32 v{40+k}, v{80+2*k}, v{81+2*k}")
    e("v_lshlrev_b32 v48, 16, v48\nv_rcp_f32 v49, v48")
    for k in range(3):
        e(f"v_lshlrev_b32 v{80+2*k}, 16, v{40+k}\nv_and_b32 v{81+2*k}, 0xffff0000, v{40+k}")
    for k in range(6): e(f"v_mul_f32 v{88+k}, v{80+k}, v49")
    for k in range(6): e(f"v_fma_f32 v{80+k}, -v{88+k}, v48, v{80+k}")
    for k in range(6): e(f"v_fmac_f32 v{88+k}, v{80+k}, v49")
    for k in range(6): e(f"v_cvt_pk_bf16_f32 v{40+k}, v{88+k}, v{88+k}")
    issue_next(P["LNI"])
    stamp()
    def ands(src, buf, bc=None):
        for k in range(4):
            if bc is None: e(f"v_and_b32 v{16+4*buf+k}, {src}, v{4+k}")
            else: e(f"v_and_b32_dpp v{16+4*buf+k}, {src}, v{4+k} row_newbcast:{bc} {DPP}")
    ands("v40", 0)
    for i in range(4):
        if i < 3: ands(f"v{41+i}", (i + 1) & 1)
        b.vneed(f"W{i}")
        A = 16 + 4 * (i & 1)
        e(f"v_mfma_f32_16x16x32_bf16 v[12:15], v[{A}:{A+3}], a[{240+4*i}:{243+4*i}], {'0' if i == 0 else 'v[12:15]'}")
    e(f"""s_lshl_b32 s52, s3, 9
    v_lshlrev_b32 v3, 5, v60
    v_lshl_add_u32 v3, v61, 4, v3
    v_add_u32 v3, s52, v3
    v_and_b32 v40, 0xffff, v44
    v_and_b32 v41, 0xffff0000, v44
    v_and_b32 v42, 0xffff, v45
    v_and_b32 v43, 0xffff0000, v45
    s_mov_b64 exec, 0xffffffff""")
    b.ds("qw", f"ds_write_b128 v3, v[12:15] offset:{L_PP}")
    e("s_mov_b64 exec, -1")
    issue_next(P["LNI"])
    b.dneed()
    e(f"""s_add_u32 s82, s82, 1
    s_mul_i32 s83, s82, 0x9e3779b1
    v_mov_b32 v56, s83
    s_barrier""")
    for w in range(4): b.ds(f"pr{w}", f"ds_read_b128 v[{80+4*w}:{83+4*w}], v62 offset:{L_PP+512*w}")
    e(f"""v_lshrrev_b32 v57, 8, v56
    v_lshrrev_b32 v58, 16, v56
    v_lshrrev_b32 v59, 24, v56
    s_lshl_b32 s52, s62, 9
    s_add_u32 s52, s52, {WS_Q}
    s_add_u32 s52, s52, s65
    v_add_u32 v3, s52, v62""")
    b.dneed("pr1")
    for k in range(4): e(f"v_add_f32 v{80+k}, v{80+k}, v{84+k}")
    b.dneed("pr3")
    for k in range(4): e(f"v_add_f32 v{88+k}, v{88+k}, v{92+k}")
    for k in range(4): e(f"v_add_f32 v{80+k}, v{80+k}, v{88+k}")
    for k in range(4): e(f"v_bfi_b32 v{80+k}, s64, v{80+k}, v{56+k}")
    e("s_mov_b64 exec, 0xffffffff")
    b.vm("pst", f"buffer_store_dwordx4 v[80:83], v3, {sWS}, 0 offen sc1")
    e("s_mov_b64 exec, -1")
    stamp()
    def glu1():
        for t in range(2):
            b.vneed(f"u{t}")
            for m in range(2):
                for k in range(4):
                    W = 64 + 8 * m + 4 * t + k
                    for hf in range(2):
                        acc = 16 + 8 * m + 2 * k + hf
                        e(f"v_dot2_f32_bf16 v{acc}, v{W}, v{40+2*t+hf}, {'0' if t == 0 else 'v%d' % acc}")
        e("v_and_b32 v3, 3, v0\nv_lshlrev_b32 v3, 6, v3\nv_lshl_add_u32 v3, v61, 2, v3\ns_lshl_b32 s52, s3, 8\nv_add_u32 v3, s52, v3")
        for j in range(8): e(f"v_permlane32_swap_b32 v{16+j}, v{24+j}")
        for j in range(8): e(f"v_add_f32 v{16+j}, v{16+j}, v{24+j}")
        for j in range(4): e(f"v_permlane16_swap_b32 v{16+j}, v{20+j}")
        for j in range(4): e(f"v_add_f32 v{16+j}, v{16+j}, v{20+j}")
        for s_ in (4, 8):
            for j in range(4): e(f"v_add_f32_dpp v{16+j}, v{16+j}, v{16+j} row_ror:{s_} {DPP}")
        e("s_mov_b32 exec_lo, 0x000f000f\ns_mov_b32 exec_hi, 0x000f000f")
        for j in range(4): b.ds("gw", f"ds_write_b32 v3, v{16+j} offset:{L_GW+16*j}")
        e("s_mov_b64 exec, -1")
    def glu1pub():
        for w in range(4): b.ds(f"gr{w}", f"ds_read_b128 v[{16+4*w}:{19+4*w}], v62 offset:{L_GW+256*w}")
        e(f"""s_lshl_b32 s52, s6, 8
        s_add_u32 s52, s52, {WS_GP}
        s_or_b32 s53, s59, s65
        s_add_u32 s52, s52, s53
        v_add_u32 v3, s52, v62""")
        b.dneed("gr1")
        for k in range(4): e(f"v_add_f32 v{16+k}, v{16+k}, v{20+k}")
        b.dneed("gr3")
        for k in range(4): e(f"v_add_f32 v{24+k}, v{24+k}, v{28+k}")
        for k in range(4): e(f"v_add_f32 v{16+k}, v{16+k}, v{24+k}")
        for k in range(4): e(f"v_bfi_b32 v{16+k}, s64, v{16+k}, v{56+k}")
        e("s_mov_b64 exec, 0xffff")
        b.vm("gpst", f"buffer_store_dwordx4 v[16:19], v3, {sWS}, 0 offen sc1")
        e("s_mov_b64 exec, -1")
    e(f"""s_lshl_b32 s52, s4, 12
    s_lshl_b32 s53, s3, 7
    s_add_u32 s52, s52, s53
    s_add_u32 s52, s52, {WS_Q}
    v_lshrrev_b32 v2, 3, v0
    v_lshlrev_b32 v2, 9, v2
    v_and_b32 v50, 7, v0
    v_lshl_add_u32 v2, v50, 4, v2
    v_add_u32 v2, s52, v2
    s_lshl_b32 s52, s3, 6
    v_lshl_add_u32 v54, v50, 3, s52
    v_lshlrev_b32 v55, 4, v60""")
    def tagchk(r, tmp):
        e(f"""v_xor_b32 {tmp}, v{r}, v56
        v_bitop3_b32 {tmp}, v{r+1}, v57, {tmp} bitop3:0xbe
        v_bitop3_b32 {tmp}, v{r+2}, v58, {tmp} bitop3:0xbe
        v_bitop3_b32 {tmp}, v{r+3}, v59, {tmp} bitop3:0xbe""")
    def gather_checked(name, regs, addr, loadtxt):
        e(f"L_{name}_chk:")
        tagchk(regs, "v3")
        e(f"""v_and_b32 v3, 0xff, v3
        v_cmp_ne_u32 vcc, 0, v3
        s_cbranch_vccz L_{name}_ok
        s_sleep 2
        {loadtxt}
        s_sub_u32 s81, s81, 1
        s_cbranch_scc1 L_end
        s_waitcnt vmcnt(0)
        s_branch L_{name}_chk
        L_{name}_ok:""")
        for k in range(4): e(f"v_and_b32 v{regs+k}, s64, v{regs+k}")
    qload = f"buffer_load_dwordx4 v[84:87], v2, {sWS}, 0 offen sc1"
    n = max(0, st["n"] - LA)
    gi_ = 0; qn = None; g1done = False
    while True:
        b.vneed(tag[n])
        if qn is None and n >= P["QI"]:
            b.vm("qg", qload); qn = st["n"]
        if gi_ < 4 and (qn is None or True) and (n % P["GUE"] == 0):
            b.vm(*gul[gi_]); gi_ += 1; gun = st["n"]
        issue_upto(n + LA)
        n += 1
        if gi_ == 4 and not g1done and n >= gun:
            glu1(); g1done = True
        if qn is not None and n >= qn and g1done: break
    b.vneed("qg")
    gather_checked("q", 84, "v2", qload)
    e(f"""v_permlane32_swap_b32 v84, v86
    v_permlane32_swap_b32 v85, v87
    v_add_f32 v84, v84, v86
    v_add_f32 v85, v85, v87
    v_mov_b32 v86, v84
    v_mov_b32 v87, v85
    v_permlane16_swap_b32 v84, v86
    v_permlane16_swap_b32 v85, v87
    v_add_f32 v84, v84, v86
    v_add_f32 v85, v85, v87
    v_add_f32_dpp v84, v84, v84 row_ror:8 {DPP}
    v_add_f32_dpp v85, v85, v85 row_ror:8 {DPP}
    v_lshrrev_b32 v3, 5, v0
    v_lshl_add_u32 v54, v3, 2, v54
    v_cvt_pk_bf16_f32 v84, v84, v85
    s_mov_b32 exec_lo, 0xff
    s_mov_b32 exec_hi, 0xff""")
    b.ds("qfw", f"ds_write_b32 v54, v84 offset:{L_QF}")
    e("s_mov_b64 exec, -1")
    issue_next(1)
    b.dneed()
    e("s_barrier")
    b.ds("qfr", f"ds_read_b128 v[8:11], v55 offset:{L_QF}")
    glu1pub()
    e(f"""s_and_b32 s52, s6, 0xfc
    s_lshl_b32 s52, s52, 8
    s_lshl_b32 s53, s3, 6
    s_add_u32 s52, s52, s53
    s_add_u32 s52, s52, {WS_GP}
    s_add_u32 s52, s52, s59
    v_and_b32 v2, 3, v0
    v_lshlrev_b32 v2, 8, v2
    v_lshl_add_u32 v2, v61, 4, v2
    v_add_u32 v2, s52, v2
    s_lshr_b32 s52, s6, 2
    s_lshl_b32 s52, s52, 15
    s_lshl_b32 s53, s3, 13
    s_add_u32 s52, s52, s53
    s_and_b32 s53, s6, 3
    s_lshl_b32 s53, s53, 8
    s_add_u32 s52, s52, s53
    v_lshl_add_u32 v54, v61, 10, v55
    v_add_u32 v54, s52, v54
    s_lshl_b32 s52, s4, 17
    s_lshl_b32 s53, s3, 15
    s_add_u32 s52, s52, s53
    s_lshl_b32 s53, s5, 7
    s_add_u32 s52, s52, s53
    v_lshrrev_b32 v3, 3, v0
    v_lshlrev_b32 v3, 10, v3
    v_and_b32 v50, 7, v0
    v_lshl_add_u32 v3, v50, 4, v3
    v_add_u32 v63, s52, v3
    s_lshl_b32 s55, s3, 12
    s_add_u32 s55, s55, {L_WO}
    v_mov_b32 v40, 0xff800000""")
    def issue_wo(t):
        e(f"s_mov_b32 m0, s55\ns_mov_b32 s53, {8192*t}")
        b.vm(f"wo{t}", f"buffer_load_dwordx4 v63, {sWO}, s53 offen {P['fWO']} lds")
        if t < 3: e("s_add_u32 s55, s55, 1024")
    gpload = f"buffer_load_dwordx4 v[48:51], v2, {sWS}, 0 offen sc1"
    def glu2():
        b.vneed("d1")
        e("s_cmp_eq_u32 s59, 0\ns_cbranch_scc0 L_gp_ok")
        gather_checked("gp", 48, "v2", gpload)
        for qp in ("[1,0,3,2]", "[2,3,0,1]"):
            for k in range(4): e(f"v_add_f32_dpp v{48+k}, v{48+k}, v{48+k} quad_perm:{qp} {DPP}")
        e("""v_cvt_pk_bf16_f32 v48, v48, v49
        v_cvt_pk_bf16_f32 v50, v50, v51
        v_and_b32 v49, 0xffff0000, v48
        v_lshlrev_b32 v48, 16, v48
        v_and_b32 v51, 0xffff0000, v50
        v_lshlrev_b32 v50, 16, v50
        v_mul_f32 v48, s61, v48
        v_mul_f32 v49, s61, v49
        v_exp_f32 v48, v48
        v_exp_f32 v49, v49
        v_add_f32 v48, 1.0, v48
        v_add_f32 v49, 1.0, v49
        v_rcp_f32 v48, v48
        v_rcp_f32 v49, v49
        v_cvt_pk_bf16_f32 v48, v48, v49
        v_and_b32 v49, 0xffff0000, v48
        v_lshlrev_b32 v48, 16, v48
        v_mul_f32 v48, v48, v50
        v_mul_f32 v49, v49, v51
        v_cvt_pk_bf16_f32 v48, v48, v48
        v_cvt_pk_bf16_f32 v49, v49, v49""")
        ands("v48", 0); ands("v49", 1)
        e(f"""v_mfma_f32_16x16x32_bf16 v[12:15], v[16:19], a[232:235], 0
        v_mfma_f32_16x16x32_bf16 v[12:15], v[20:23], a[236:239], v[12:15]
        s_and_b32 s52, s6, 3
        s_mul_i32 s52, s52, {8*GROW}
        s_and_b32 s53, s6, 0xfc
        s_add_u32 s53, s53, s3
        s_lshl_b32 s53, s53, 6
        s_add_u32 s52, s52, s53
        s_add_u32 s52, s52, {WS_G}
        s_add_u32 s52, s52, s59
        v_lshrrev_b32 v3, 1, v60
        v_mul_u32_u24 v3, {GROW}, v3
        v_and_b32 v50, 1, v60
        v_lshl_add_u32 v3, v50, 5, v3
        v_lshl_add_u32 v3, v61, 4, v3
        v_add_u32 v3, s52, v3""")
        for k in range(4): e(f"v_bfi_b32 v{12+k}, s64, v{12+k}, v{56+k}")
        e("s_mov_b64 exec, 0xffffffff")
        b.vm("gst", f"buffer_store_dwordx4 v[12:15], v3, {sWS}, 0 offen sc1")
        e("s_mov_b64 exec, -1")
        st["vfree"] = 64
    b.dneed("qfr")
    stamp()
    gdone = False
    for j in range(16):
        b.vneed(f"K{4*j+3}")
        for k in range(4):
            for u in range(4):
                i = 4 * j + u; d = 80 + (i & 15)
                e(f"v_dot2_f32_bf16 v{d}, v{kreg(i)+k}, v{8+k}, {'0' if k == 0 else 'v%d' % d}")
        st["kfree"] = KR + 4 * j + 4
        n0 = st["n"]
        if j == P["GPJ"]:
            e("s_movk_i32 s53, 4096")
            b.vm("gpg", gpload)
            b.vm("d0", f"buffer_load_dwordx4 a[232:235], v54, {sD}, 0 offen {P['fD']}")
            b.vm("d1", f"buffer_load_dwordx4 a[236:239], v54, {sD}, s53 offen {P['fD']}")
            gn = st["n"]
        if P["WOJ"] <= j < P["WOJ"] + 4: issue_wo(j - P["WOJ"])
        issue_upto(pos[f"K{4*j+3}"] + P["LAK"])
        if st["n"] == n0 and (j & 1): issue_next(1)
        if j % 4 == 3:
            B = j // 4
            for i in range(8):
                e(f"v_add_f32_dpp v{80+i}, v{80+i}, v{80+i} row_ror:8 row_mask:0xf bank_mask:0x3")
            for i in range(8):
                e(f"v_add_f32_dpp v{80+i}, v{88+i}, v{88+i} row_ror:8 row_mask:0xf bank_mask:0xc")
            for i in range(4):
                e(f"v_add_f32_dpp v{80+i}, v{80+i}, v{80+i} row_half_mirror row_mask:0xf bank_mask:0x5")
            for i in range(4):
                e(f"v_add_f32_dpp v{80+i}, v{84+i}, v{84+i} row_half_mirror row_mask:0xf bank_mask:0xa")
            for i in range(4): e(f"v_add_f32_dpp v{80+i}, v{80+i}, v{80+i} quad_perm:[1,0,3,2] {DPP}")
            for i in range(4): e(f"v_add_f32_dpp v{64+4*B+i}, v{80+i}, v{80+i} quad_perm:[2,3,0,1] {DPP}")
            e(f"v_max3_f32 v40, v{64+4*B}, v{65+4*B}, v40\nv_max3_f32 v40, v{66+4*B}, v{67+4*B}, v40")
        if j > P["GPJ"] and not gdone and pos[f"K{4*j+3}"] >= gn - 1:
            glu2(); gdone = True
    assert gdone
    stamp()
    e(f"""v_max_f32_dpp v40, v40, v40 row_ror:4 {DPP}
    s_lshl_b32 s52, s3, 2
    v_mov_b32 v3, s52
    v_max_f32_dpp v40, v40, v40 row_ror:8 {DPP}
    v_mov_b32 v48, 0
    v_mov_b32 v41, v40
    v_permlane16_swap_b32 v41, v40
    v_max_f32 v40, v40, v41
    v_mov_b32 v41, v40
    v_permlane32_swap_b32 v41, v40
    v_max_f32 v40, v40, v41
    s_mov_b64 exec, 1""")
    b.ds("mw", f"ds_write_b32 v3, v40 offset:{L_MX}")
    e("s_mov_b64 exec, -1")
    issue_next(P["MIDX"])
    b.vneed("wo3"); b.vneed("clr")
    b.dneed()
    e("s_barrier")
    b.ds("mr", f"ds_read_b128 v[44:47], v48 offset:{L_MX}")
    e(f"""v_lshlrev_b32 v49, 3, v61
    v_bfe_u32 v50, v0, 2, 2
    v_add_u32 v49, v49, v50
    v_lshlrev_b32 v49, 7, v49
    v_and_b32 v50, 3, v0
    v_lshl_add_u32 v49, v50, 3, v49
    s_lshl_b32 s52, s3, 5
    v_add_u32 v49, s52, v49""")
    for kk in range(4):
        for hh in range(2):
            r = 24 + 4 * kk + 2 * hh
            b.ds("wtr", f"ds_read_b64_tr_b16 v[{r}:{r+1}], v49 offset:{L_WO+(32*kk+4*hh)*128}")
    b.dneed("mr")
    e("""v_max3_f32 v40, v44, v45, v46
    v_max_f32 v40, v40, v47
    v_mul_f32 v55, s60, v40
    v_sub_f32 v41, 0, v55""")
    for i in range(16): e(f"v_fma_f32 v{64+i}, v{64+i}, s60, v41")
    for i in range(16): e(f"v_exp_f32 v{64+i}, v{64+i}")
    e("v_add_f32 v42, v64, v65\nv_add_f32 v43, v66, v67")
    for i in range(4, 16): e(f"v_add_f32 v{42+(i&1)}, v{42+(i&1)}, v{64+i}")
    e("v_add_f32 v42, v42, v43")
    for i in range(8): e(f"v_cvt_pk_bf16_f32 v{64+i}, v{64+i}, v{64+i}")
    e(f"v_add_f32_dpp v42, v42, v42 row_ror:4 {DPP}")
    for i in range(8, 12): e(f"v_cvt_pk_bf16_f32 v{64+i}, v{64+i}, v{64+i}")
    e(f"v_add_f32_dpp v42, v42, v42 row_ror:8 {DPP}")
    for i in range(12, 16): e(f"v_cvt_pk_bf16_f32 v{64+i}, v{64+i}, v{64+i}")
    e("""v_mov_b32 v43, v42
    v_permlane16_swap_b32 v43, v42
    v_add_f32 v42, v42, v43
    v_mov_b32 v43, v42
    v_permlane32_swap_b32 v43, v42
    v_add_f32 v42, v42, v43
    s_mov_b64 exec, 1""")
    b.ds("lw", f"ds_write_b32 v3, v42 offset:{L_LS}")
    e("s_mov_b64 exec, -1")
    b.dneed()
    e("s_barrier")
    b.ds("lr", f"ds_read_b128 v[44:47], v48 offset:{L_LS}")
    e(f"""s_lshl_b32 s52, s62, 4
    s_add_u32 s52, s52, {WS_ML}
    s_add_u32 s52, s52, s65
    v_mov_b32 v3, s52""")
    b.dneed()
    e("""v_add_f32 v44, v44, v45
    v_add_f32 v46, v46, v47
    v_add_f32 v45, v44, v46
    v_bfi_b32 v44, s64, v55, v56
    v_bfi_b32 v45, s64, v45, v57
    v_mov_b32 v46, v58
    v_mov_b32 v47, v59
    s_mov_b64 exec, 1""")
    b.vm("mlst", f"buffer_store_dwordx4 v[44:47], v3, {sWS}, 0 offen sc1")
    e("s_mov_b64 exec, -1")
    e(f"""s_lshl_b32 s52, s3, 9
    v_lshlrev_b32 v51, 5, v60
    v_lshl_add_u32 v51, v61, 4, v51
    v_add_u32 v51, s52, v51
    v_lshlrev_b32 v50, 3, v0
    s_lshl_b32 s52, s62, 8
    s_add_u32 s52, s52, s65
    v_lshl_add_u32 v49, v0, 2, s52
    s_lshl_b32 s52, s4, 11
    v_lshlrev_b32 v48, 8, v60
    v_lshl_add_u32 v48, v61, 4, v48
    v_add_u32 v48, s52, v48
    v_mov_b32 v3, {OOB:#x}
    v_cmp_gt_u32 vcc, 8, v60
    v_lshl_add_u32 v53, v61, 4, s63
    s_add_u32 s52, s52, {WS_Y}
    v_cndmask_b32 v48, v3, v48, vcc
    v_add_u32 v52, s52, v62
    s_lshl_b32 s52, s4, 7
    s_add_u32 s52, s52, {WS_ML}
    v_and_b32 v2, 7, v0
    v_lshl_add_u32 v2, v2, 4, s52
    s_lshl_b32 s52, s5, 4
    s_add_u32 s52, s52, {WS_ML}
    s_add_u32 s52, s52, s80
    v_and_b32 v54, 31, v0
    v_lshl_add_u32 v54, v54, 7, s52
    s_lshl_b32 s52, s4, 5
    s_add_u32 s52, s52, s80
    v_and_b32 v63, 3, v0
    v_lshlrev_b32 v63, 3, v63
    v_lshl_add_u32 v63, v61, 1, v63
    v_add_u32 v63, s52, v63
    s_mul_i32 s52, s4, {GROW}
    s_add_u32 s52, s52, {WS_G}
    s_add_u32 s52, s52, s80
    v_add_u32 v80, s52, v62
    v_cmp_gt_u32 vcc, 48, v0
    s_movk_i32 s66, 4096
    s_movk_i32 s67, 8192
    v_cndmask_b32 v81, v3, v80, vcc""")
    mlload = f"buffer_load_dwordx4 v[96:99], v2, {sWS}, 0 offen sc1"
    ml2load = f"buffer_load_dwordx4 v[100:103], v54, {sWS}, 0 offen sc1"
    gloads = [f"buffer_load_dwordx4 v[{128+4*t}:{131+4*t}], {'v81' if t == 10 else 'v80'}, {sWS}, {['0','s66','s67'][t//4]} offen offset:{(t%4)*1024} sc1" for t in range(11)]
    def gathers():
        b.vm("ml", mlload)
        b.vm("ml2", ml2load)
        for t in range(11): b.vm("gg", gloads[t])
        b.vm("xf", f"buffer_load_ushort v104, v63, {sX}, 0 offen")
    def reduce4(r):
        e(f"""v_permlane32_swap_b32 v{r}, v{r+2}
        v_permlane32_swap_b32 v{r+1}, v{r+3}
        v_add_f32 v{r}, v{r}, v{r+2}
        v_add_f32 v{r+1}, v{r+1}, v{r+3}
        v_permlane16_swap_b32 v{r}, v{r+1}
        v_add_f32 v{r}, v{r}, v{r+1}
        v_add_f32_dpp v{r}, v{r}, v{r} row_ror:4 {DPP}
        v_add_f32_dpp v{r}, v{r}, v{r} row_ror:8 {DPP}""")
    def pv_ands(i):
        B, r = i // 16, i % 16
        ands(f"v{64+4*B+(r&3)}", i & 1, bc=4 * (r >> 2))
    pv_ands(0)
    gath = False
    for i in range(64):
        if i + 1 < 64: pv_ands(i + 1)
        b.vneed(f"V{i}")
        A = 16 + 4 * (i & 1)
        e(f"v_mfma_f32_16x16x32_bf16 v[12:15], v[{A}:{A+3}], a[{4*i}:{4*i+3}], {'0' if i == 0 else 'v[12:15]'}")
        n0 = st["n"]
        issue_upto(pos[f"V{i}"] + LAV)
        if st["n"] == n0 and i % 4 == 3 and i < NF + LAV: issue_next(1)
        if st["n"] == len(seq) and not gath:
            gathers(); gath = True
    stamp()
    b.vneed("ml")
    gather_checked("ml", 96, "v2", mlload)
    e("s_mov_b64 exec, 0xffffffff")
    b.ds("ow", f"ds_write_b128 v51, v[12:15] offset:{L_OP}")
    e(f"""s_mov_b64 exec, -1
    v_max_f32_dpp v44, v96, v96 row_half_mirror {DPP}
    v_and_b32 v55, s64, v55""")
    b.dneed()
    e("s_barrier")
    for w in range(4): b.ds(f"or{w}", f"ds_read_b64 v[{176+2*w}:{177+2*w}], v50 offset:{L_OP+512*w}")
    e(f"""v_max_f32_dpp v44, v44, v44 quad_perm:[2,3,0,1] {DPP}
    v_max_f32_dpp v44, v44, v44 quad_perm:[1,0,3,2] {DPP}
    v_sub_f32 v45, v96, v44
    v_sub_f32 v46, v55, v44
    v_exp_f32 v45, v45
    v_exp_f32 v46, v46
    v_mul_f32 v45, v45, v97
    v_add_f32_dpp v45, v45, v45 row_half_mirror {DPP}""")
    b.dneed("or1")
    e(f"""v_add_f32 v176, v176, v178
    v_add_f32 v177, v177, v179
    v_add_f32_dpp v45, v45, v45 quad_perm:[2,3,0,1] {DPP}""")
    b.dneed("or3")
    e(f"""v_add_f32 v180, v180, v182
    v_add_f32 v181, v181, v183
    v_add_f32_dpp v45, v45, v45 quad_perm:[1,0,3,2] {DPP}
    v_add_f32 v176, v176, v180
    v_rcp_f32 v45, v45
    v_add_f32 v177, v177, v181
    v_mul_f32 v45, v45, v46
    v_mul_f32 v176, v176, v45
    v_mul_f32 v177, v177, v45
    v_cvt_pk_bf16_f32 v176, v176, v177
    v_min_u32 v176, -2, v176
    s_mov_b32 exec_lo, 0x11111111
    s_mov_b32 exec_hi, 0x11111111
    s_mov_b64 exec, -1
    v_mov_b32_dpp v177, v176 quad_perm:[1,1,1,1] {DPP}
    v_mov_b32_dpp v178, v176 quad_perm:[2,2,2,2] {DPP}
    v_mov_b32_dpp v179, v176 quad_perm:[3,3,3,3] {DPP}
    s_mov_b32 exec_lo, 0x11111111
    s_mov_b32 exec_hi, 0x11111111""".replace("""    s_mov_b32 exec_lo, 0x11111111
    s_mov_b32 exec_hi, 0x11111111
    s_mov_b64 exec, -1
""", ""))
    e(f"buffer_store_dwordx4 v[176:179], v49, {sWS}, 0 offen offset:{WS_O} sc1")
    e("s_mov_b64 exec, -1")
    e("L_poll1:")
    for kk in range(4):
        e(f"buffer_load_dwordx4 v[{180+4*kk}:{183+4*kk}], v48, {sWS}, 0 offen offset:{WS_O+64*kk} sc1")
    e("""s_sub_u32 s81, s81, 1
    s_cbranch_scc1 L_end
    s_waitcnt vmcnt(3)
    v_max3_u32 v3, v180, v181, v182
    s_waitcnt vmcnt(2)
    v_max3_u32 v3, v3, v183, v184
    v_max3_u32 v40, v185, v186, v187
    s_waitcnt vmcnt(1)
    v_max3_u32 v3, v3, v188, v189
    v_max3_u32 v40, v40, v190, v191
    s_waitcnt vmcnt(0)
    v_max3_u32 v3, v3, v192, v193
    v_max3_u32 v40, v40, v194, v195
    v_max_u32 v3, v3, v40
    v_cmp_eq_u32 vcc, -1, v3
    s_and_b64 exec, exec, vcc
    s_cbranch_scc0 L_got1""")
    if P["SLEEP"]: e(f"s_sleep {P['SLEEP']}")
    e("""s_branch L_poll1
    L_got1:
    s_mov_b64 exec, -1""")
    for kk in range(4):
        e(f"v_mfma_f32_16x16x32_bf16 v[12:15], v[{24+4*kk}:{27+4*kk}], v[{180+4*kk}:{183+4*kk}], {'0' if kk == 0 else 'v[12:15]'}")
    for s in (4, 2, 1):
        for r in range(4): e(f"v_add_f32_dpp v{12+r}, v{12+r}, v{12+r} row_shl:{s} {DPP} bound_ctrl:0")
    for r in range(4): e(f"v_min_u32 v{12+r}, -2, v{12+r}")
    e(f"""s_mov_b32 exec_lo, 0x00010001
    s_mov_b32 exec_hi, 0x00010001
    buffer_store_dwordx4 v[12:15], v53, {sWS}, 0 offen sc1
    s_mov_b64 exec, -1
    s_cmp_eq_u32 s80, 0
    s_cbranch_scc0 L_fin""")
    gather_checked("ml2", 100, "v54", ml2load)
    yl = [f"buffer_load_dwordx4 v[180:183], v52, {sWS}, 0 offen sc1", f"buffer_load_dwordx4 v[184:187], v52, {sWS}, 0 offen offset:1024 sc1"]
    e("\n".join(yl))
    e("L_g_chk:")
    tagchk(168, "v3")
    e("v_cmp_gt_u32 vcc, 48, v0\nv_cndmask_b32 v3, 0, v3, vcc")
    for t in range(10):
        for k in range(4): e(f"v_bitop3_b32 v3, v{128+4*t+k}, v{56+k}, v3 bitop3:0xbe")
    e("""v_and_b32 v3, 0xff, v3
    v_cmp_ne_u32 vcc, 0, v3
    s_cbranch_vccz L_g_ok
    s_sleep 2""")
    e("\n".join(gloads))
    e("""s_sub_u32 s81, s81, 1
    s_cbranch_scc1 L_end
    s_waitcnt vmcnt(0)
    s_branch L_g_chk
    L_g_ok:""")
    for t in range(11):
        for k in range(4): e(f"v_and_b32 v{128+4*t+k}, s64, v{128+4*t+k}")
    for t in range(1, 11):
        for k in range(4): e(f"v_add_f32 v{128+k}, v{128+k}, v{128+4*t+k}")
    reduce4(128)
    e("""v_cvt_pk_bf16_f32 v128, v128, v128
    v_lshlrev_b32 v128, 16, v128
    v_mul_f32 v129, s61, v128
    v_exp_f32 v129, v129
    v_add_f32 v129, 1.0, v129
    v_rcp_f32 v129, v129
    v_mul_f32 v128, v128, v129
    v_cvt_pk_bf16_f32 v128, v128, v128
    v_lshlrev_b32 v41, 16, v128
    v_lshlrev_b32 v42, 16, v104
    s_branch L_chk2
    L_poll2:""")
    e("\n".join(yl))
    e("""s_sub_u32 s81, s81, 1
    s_cbranch_scc1 L_end
    L_chk2:
    s_waitcnt vmcnt(1)
    v_max3_u32 v3, v180, v181, v182
    s_waitcnt vmcnt(0)
    v_max3_u32 v40, v184, v185, v186
    v_max3_u32 v3, v3, v183, v187
    v_max_u32 v3, v3, v40
    v_cmp_eq_u32 vcc, -1, v3
    s_and_b64 exec, exec, vcc
    s_cbranch_scc0 L_got2""")
    if P["SLEEP"]: e(f"s_sleep {P['SLEEP']}")
    e("""s_branch L_poll2
    L_got2:
    s_mov_b64 exec, -1""")
    for k in range(4): e(f"v_add_f32 v{180+k}, v{180+k}, v{184+k}")
    reduce4(180)
    e(f"""v_cvt_pk_bf16_f32 v180, v180, v180
    v_lshlrev_b32 v180, 16, v180
    v_mul_f32 v180, v180, v41
    v_cvt_pk_bf16_f32 v180, v180, v180
    v_lshlrev_b32 v180, 16, v180
    v_add_f32 v180, v180, v42
    v_cvt_pk_bf16_f32 v180, v180, v180
    s_mov_b32 exec_lo, 0x000f000f
    s_mov_b32 exec_hi, 0x000f000f
    buffer_store_short v180, v63, {sO}, 0 offen
    s_cmp_eq_u32 s4, 0
    s_cbranch_scc0 L_fin
    v_mov_b32 v3, {WS_EP}
    v_mov_b32 v40, s82
    s_mov_b64 exec, 1
    buffer_store_dword v40, v3, {sWS}, 0 offen
    L_fin:""")
    if P["STAMP"]:
        e("s_mov_b64 exec, -1\ns_waitcnt vmcnt(0)")
        stamp()
        if P["STAMP"] == 2:
            e("s_waitcnt lgkmcnt(0)\nv_mov_b32 v64, 0")
            for k in range(7):
                e(f"s_not_b32 s52, s{86+2*k}\nv_writelane_b32 v64, s{86+2*k}, {2*k}\nv_writelane_b32 v64, s52, {2*k+1}")
            e("v_lshlrev_b32 v3, 2, v0\ns_mov_b64 exec, 0x3fff")
            e(f"buffer_atomic_umax v64, v3, {sDB}, 0 offen offset:8")
        else:
            e("s_getreg_b32 s84, hwreg(HW_REG_XCC_ID)\ns_mov_b32 s85, s80")
            e(f"s_lshl_b32 s52, s2, 2\ns_add_u32 s52, s52, s3\ns_lshl_b32 s52, s52, 6\ns_add_u32 s52, s52, 0x8000000\nv_mov_b32 v3, s52\ns_waitcnt lgkmcnt(0)")
            order = list(range(86, 100)) + [84, 85]
            for k, s in enumerate(order): e(f"v_mov_b32 v{64+k}, s{s}")
            e("s_mov_b64 exec, 1")
            for k in range(4): e(f"buffer_store_dwordx4 v[{64+4*k}:{67+4*k}], v3, {sWS}, 0 offen offset:{16*k}")
    if P.get("SPIN"):
        e(f"""s_or_b32 s52, s2, s3
        s_cmp_eq_u32 s52, 0
        s_cbranch_scc0 L_end
        L_spin:
        s_memrealtime s[52:53]
        s_waitcnt lgkmcnt(0)
        s_sub_u32 s52, s52, s100
        s_cmp_lt_u32 s52, {P['SPIN']*100}
        s_cbranch_scc1 L_spin""")
    e("L_end:\ns_endpgm")
    body = b.finalize()
    out = HDR + f"; @launch grid=(256,1,1) block=(256,1,1) lds={LDS_BYTES}\n"
    out += '.amdgcn_target "amdgcn-amd-amdhsa--gfx950"\n.text\n' + f".globl {KN}_kernel\n.p2align 8\n.type {KN}_kernel,@function\n"
    out += "\n".join(l if l.endswith(":") else "    " + l for l in body) + "\n"
    out += f""".section .rodata,"a"
.p2align 6
.amdhsa_kernel {KN}_kernel
  .amdhsa_next_free_vgpr 512
  .amdhsa_next_free_sgpr 102
  .amdhsa_accum_offset 256
  .amdhsa_group_segment_fixed_size 0
  .amdhsa_kernarg_size 96
  .amdhsa_user_sgpr_count 2
  .amdhsa_user_sgpr_kernarg_segment_ptr 1
  .amdhsa_system_sgpr_workgroup_id_x 1
.end_amdhsa_kernel
"""
    return out

if __name__ == "__main__":
    name = sys.argv[1]
    kw = {}
    for a in sys.argv[2:]:
        k, v = a.split("=", 1)
        try: v = int(v)
        except ValueError: pass
        kw[k] = v
    open(name, "w").write(gen(**kw))
```
